```python
import torch

def _softmax(x, axis=-1):
    return torch.softmax(x, dim=axis)
def _gelu(x):
    return torch.nn.functional.gelu(x, approximate="tanh")
def _silu(x):
    return torch.nn.functional.silu(x)
def _sigmoid(x):
    return torch.sigmoid(x)
def _layernorm(x, axis=-1, eps=1e-5):
    m = x.mean(dim=axis, keepdim=True)
    v = x.var(dim=axis, keepdim=True, unbiased=False)
    return (x - m) / torch.sqrt(v + eps)
def _scatter_add(tgt, idx, src, axis=0):
    return tgt.clone().index_add_(axis, idx, src)
def _segment_sum(src, seg, n):
    out = torch.zeros((n,) + src.shape[1:], dtype=src.dtype)
    return out.index_add_(0, seg, src)
def _pad(x, pw):
    flat = tuple(v for pair in reversed(pw) for v in pair)
    return torch.nn.functional.pad(x, flat)

kernel_name = 'sequential_preLN__softmax_full_mha__dense_activation_gelu__prompt'

def setup_inputs():

    _w = (lambda a: (lambda t: t.to(torch.bfloat16) if t.is_floating_point() else t)(torch.as_tensor(a)))
    def _A_setup():
        B, S, D = 1, 2048, 448
        return {
            "x": _w((lambda *s: torch.randn(*s, dtype=torch.bfloat16) * 0.05)(B, S, D)),
            "wqkv": _w((lambda *s: torch.randn(*s, dtype=torch.bfloat16) * 0.05)(D, 3 * D)),
            "wo": _w((lambda *s: torch.randn(*s, dtype=torch.bfloat16) * 0.05)(D, D)),
        }
    _A_in = _A_setup()

    def _B_setup():
        B, S, D, F = 1, 2048, 448, 1792
        return {
            "x": _w((lambda *s: torch.randn(*s, dtype=torch.bfloat16) * 0.05)(B, S, D)),
            "w1": _w((lambda *s: torch.randn(*s, dtype=torch.bfloat16) * 0.8)(D, F) * (D ** -0.5)),
            "b1": _w((lambda *s: torch.randn(*s, dtype=torch.bfloat16) * 12.8)(F) * 0.01),
            "w2": _w((lambda *s: torch.randn(*s, dtype=torch.bfloat16) * 0.8)(F, D) * (F ** -0.5)),
            "b2": _w((lambda *s: torch.randn(*s, dtype=torch.bfloat16) * 12.8)(D) * 0.01),
        }
    _B_in = _B_setup()

    return {
        "A_x": _A_in["x"],
        "A_wqkv": _A_in["wqkv"],
        "A_wo": _A_in["wo"],
        "B_x": _B_in["x"],
        "B_w1": _B_in["w1"],
        "B_b1": _B_in["b1"],
        "B_w2": _B_in["w2"],
        "B_b2": _B_in["b2"],
    }

def reference(A_x, A_wqkv, A_wo, B_x, B_w1, B_b1, B_w2, B_b2):
    def _A_ref(x, wqkv, wo):
        B, S, D = x.shape
        H = 16; Dh = D // H
        qkv = (lambda x, *d: x.permute(*d))((x @ wqkv).reshape(B, S, 3, H, Dh), 2, 0, 3, 1, 4)
        q, k, v = qkv[0], qkv[1], qkv[2]
        scale = Dh ** -0.5
        scores = torch.einsum("bhqd,bhkd->bhqk", q, k) * scale
        p = _softmax(scores, axis=-1)
        o = torch.einsum("bhqk,bhkd->bhqd", p, v)
        return (lambda x, *d: x.permute(*d))(o, 0, 2, 1, 3).reshape(B, S, D) @ wo

    def _B_ref(x, w1, b1, w2, b2):
        h = torch.einsum("bsd,df->bsf", x, w1) + b1
        h = _gelu(h)
        return torch.einsum("bsf,fd->bsd", h, w2) + b2

    x = A_x
    h = x + _A_ref(_layernorm(x, axis=-1), A_wqkv, A_wo)
    h2 = h + _B_ref(_layernorm(h, axis=-1), B_w1, B_b1, B_w2, B_b2)
    return h2
```

```python
import math
NAME = "sequential_preLN__softmax_full_mha__dense_activation_gelu__prompt"
S, D, H, DH, F = 2048, 448, 16, 28, 1792
MB = 1 << 20
QF  = 0
KV  = 2*MB
NRM = 6*MB
OF  = 7*MB
HF  = 9*MB
H1  = 11*MB
CS1 = 18*MB
ST2 = 19*MB
WS_BYTES = 268435456

def v(b, n=1): return f"v{b}" if n == 1 else f"v[{b}:{b+n-1}]"
def a(b, n=1): return f"a{b}" if n == 1 else f"a[{b}:{b+n-1}]"
def s(b, n=1): return f"s{b}" if n == 1 else f"s[{b}:{b+n-1}]"
import struct
def fhex(x): return "0x%08x" % struct.unpack("<I", struct.pack("<f", x))[0]

SX, SWQKV, SWO, SW1, SW2, SWS, SOUT, SB1, SB2, SDBG = 8, 12, 16, 20, 24, 28, 32, 36, 40, 44
KARG = {SX: (0, S*D*2), SWQKV: (8, D*3*D*2), SWO: (16, D*D*2), SW1: (32, D*F*2), SB1: (40, F*2),
        SW2: (48, F*D*2), SB2: (56, D*2), SOUT: (64, S*D*2), SDBG: (72, 256), SWS: (80, WS_BYTES)}

class Asm:
    def __init__(self):
        self.L = []
        self.nlab = 0
    def __call__(self, t):
        for x in t.split("\n"):
            self.L.append("  " + x.strip())
    def lab(self, name): self.L.append(name + ":")
    def newlab(self, p="L"):
        self.nlab += 1
        return f"{p}_{self.nlab}"
    def c(self, t): self.L.append("  ; " + t)
    def srds(self, lst):
        for r in lst:
            self(f"s_load_dwordx2 {s(r,2)}, s[0:1], {KARG[r][0]}")
        for r in lst:
            self(f"s_mov_b32 {s(r+2)}, {KARG[r][1]}")
            self(f"s_mov_b32 {s(r+3)}, 0x20000")
    def mfma(self, d, A, B, C=None, dreg=v, areg=v, breg=v):
        cs = dreg(d, 16) if C is None else C
        self(f"v_mfma_f32_32x32x16_bf16 {dreg(d,16)}, {areg(A,4)}, {breg(B,4)}, {cs}")
    def text(self): return "\n".join(self.L)

def kernel_wrap(name, body, nvgpr, nagpr=0, nsgpr=96):
    acc = (nvgpr + 3) // 4 * 4
    tot = acc + nagpr
    return f""".text
.globl {name}
.p2align 8
.type {name},@function
{name}:
{body}
  s_endpgm
.section .rodata,"a"
.p2align 6
.amdhsa_kernel {name}
  .amdhsa_next_free_vgpr {tot}
  .amdhsa_next_free_sgpr {nsgpr}
  .amdhsa_accum_offset {acc}
  .amdhsa_group_segment_fixed_size 0
  .amdhsa_kernarg_size 88
  .amdhsa_user_sgpr_count 2
  .amdhsa_user_sgpr_kernarg_segment_ptr 1
  .amdhsa_system_sgpr_workgroup_id_x 1
.end_amdhsa_kernel
"""

class Trk:
    def __init__(self, A, name, cap):
        self.A = A; self.name = name; self.cap = cap; self.q = []; self.done = 0
    def issue(self, tag, text):
        self.A(text); self.q.append(tag)
    def count(self, tag):
        idx = max((i for i, t in enumerate(self.q) if t == tag), default=None)
        if idx is None or idx < self.done: return None
        return len(self.q) - 1 - idx
    def wait(self, tag):
        n = self.count(tag)
        if n is None: return
        n = min(n, self.cap)
        self.A(f"s_waitcnt {self.name}({n})")
        self.done = len(self.q) - n
    def waitstr(self, tag):
        n = self.count(tag)
        if n is None: return ""
        n = min(n, self.cap); self.done = len(self.q) - n
        return f"{self.name}({n})"
def wait2(A, vm, vt, ds, dt):
    p = [x for x in ((vm.waitstr(vt) if vt is not None else ""), (ds.waitstr(dt) if dt is not None else "")) if x]
    if p: A("s_waitcnt " + " ".join(p))
def spread(items, n):
    out = []; L = len(items)
    for i in range(n): out.append(items[(i*L)//n:((i+1)*L)//n])
    return out
```

```python
import re
RE_REG = re.compile(r'^(-|\|)?([vas])(\d+)\|?$')
RE_RNG = re.compile(r'^(-|\|)?([vas])\[(\d+):(\d+)\]\|?$')
TRANS = ("v_exp_f32","v_log_f32","v_rcp_f32","v_rsq_f32","v_sqrt_f32","v_sin_f32","v_cos_f32","v_exp_f16","v_rcp_f16")
def regs(op):
    op = op.strip()
    m = RE_REG.match(op)
    if m: return {(m.group(2), int(m.group(3)))}
    m = RE_RNG.match(op)
    if m: return {(m.group(2), i) for i in range(int(m.group(3)), int(m.group(4))+1)}
    if op in ("vcc",): return {("s",106),("s",107)}
    if op == "vcc_lo": return {("s",106)}
    if op == "vcc_hi": return {("s",107)}
    if op == "m0": return {("m",0)}
    if op in ("exec",): return {("e",0),("e",1)}
    if op == "exec_lo": return {("e",0)}
    if op == "exec_hi": return {("e",1)}
    return set()
class I:
    pass
def parse(line):
    t = line.split(";")[0].strip()
    if not t or t.endswith(":") or t.startswith("."): return None
    sp = t.split(None, 1)
    mn = sp[0]; rest = sp[1] if len(sp) > 1 else ""
    ops = []; cur = ""; depth = 0
    for ch in rest:
        if ch == "[": depth += 1
        if ch == "]": depth -= 1
        if ch == "," and depth == 0: ops.append(cur.strip()); cur = ""
        else: cur += ch
    if cur.strip(): ops.append(cur.strip())
    mods = ""
    if ops:
        last = ops[-1].split(None, 1)
        ops[-1] = last[0]
        if len(last) > 1: mods = last[1]
    x = I(); x.mn = mn; x.ops = ops; x.mods = mods; x.text = t
    base = mn.replace("_e32","").replace("_e64","").replace("_dpp","").replace("_sdwa","")
    x.base = base
    x.w = set(); x.r = set(); x.cls = "other"; x.srcC = set(); x.srcAB = set(); x.passes = 0
    x.nop = 1; x.dpp = False; x.storedata = set(); x.ldsdma = False; x.vmem_s = set()
    R = [regs(o) for o in ops]
    if base == "s_nop": x.nop = int(ops[0], 0) + 1; x.cls = "nop"; return x
    if base.startswith("v_mfma"):
        x.cls = "mfma"; x.passes = 8 if "32x32x16" in base else 4
        x.w = R[0]; x.srcAB = R[1] | R[2]; x.srcC = R[3]; x.r = x.srcAB | x.srcC
        return x
    if base.startswith("v_"):
        x.cls = "valu"
        x.trans = base in TRANS
        x.dl = base.startswith("v_dot")
        x.dpp = ("dpp" in mn) or ("row_" in mods) or ("quad_perm" in mods) or ("wave_" in mods)
        x.perml = base.startswith("v_permlane")
        x.rdl = base in ("v_readfirstlane_b32", "v_readlane_b32")
        x.opsel = ("dst_sel" in mods)
        if base.startswith("v_cmp"):
            x.w = R[0]; x.r = set().union(*R[1:])
        elif x.perml and "swap" in base:
            x.w = R[0] | R[1]; x.r = R[0] | R[1]
        elif base in ("v_add_co_u32","v_sub_co_u32","v_addc_co_u32","v_subb_co_u32"):
            x.w = R[0] | R[1]; x.r = set().union(*R[2:])
        else:
            x.w = R[0]; x.r = set().union(*R[1:]) if len(R) > 1 else set()
            if base.startswith("v_dot2c") or base.startswith("v_fmac") or base.startswith("v_mac") or x.dpp or "UNUSED_PRESERVE" in mods or base=="v_writelane_b32":
                x.r |= R[0]
            if base == "v_cndmask_b32" and len(ops) == 3: x.r |= regs("vcc")
        return x
    if base.startswith("ds_"):
        x.cls = "ds"
        if "read" in base or "_rtn" in base or "permute" in base or "swizzle" in base:
            x.w = R[0]; x.r = set().union(*R[1:]) if len(R) > 1 else set()
        else:
            x.r = set().union(*R)
        return x
    if base.startswith("buffer_") or base.startswith("global_"):
        x.cls = "vmem"
        allm = (mods + " " + " ".join(ops)).split()
        x.ldsdma = ("lds" in mods.split()) or ("_lds_" in base)
        if base in ("buffer_wbl2","buffer_inv"): return x
        if "load" in base and not x.ldsdma:
            x.w = R[0]; x.r = set().union(*R[1:])
        elif "load" in base:
            x.r = set().union(*R) | {("m",0)}
        elif "atomic" in base and ("sc0" in mods.split()):
            x.w = R[0]; x.r = set().union(*R)
        else:
            x.r = set().union(*R)
            if "x3" in base or "x4" in base:
                x.storedata = R[0] if base.startswith("buffer_") else R[1]
        x.vmem_s = {r for r in x.r if r[0] == "s"}
        return x
    if base.startswith("s_"):
        x.cls = "salu"
        if base.startswith("s_cbranch") or base == "s_branch": x.cls = "branch"; return x
        if base.startswith(("s_cmp","s_waitcnt","s_barrier","s_endpgm","s_setprio","s_sleep","s_bitcmp")):
            x.r = set().union(*R) if R else set(); return x
        x.w = R[0] if R else set(); x.r = set().union(*R[1:]) if len(R) > 1 else set()
        return x
    raise ValueError("unknown instr " + line)

def need(p, c):
    n = 0
    vg = lambda S_: {r for r in S_ if r[0] in "va"}
    if p.cls == "valu":
        wv = vg(p.w); ws = {r for r in p.w if r[0] == "s"}
        if c.cls == "mfma" and wv & c.r: n = max(n, 3 if p.dl else 2)
        if c.cls == "valu":
            if (c.dpp or c.perml) and wv & c.r: n = max(n, 2)
            if c.rdl and wv & c.r: n = max(n, 1)
            if p.trans and not c.trans and wv & c.r: n = max(n, 1)
            if p.opsel and wv & (c.r | c.w): n = max(n, 1)
            if ws & c.r: n = max(n, 4 if (c.rdl or c.base=="v_writelane_b32") else 2)
            if p.dl:
                if c.base == p.base:
                    ab = set().union(*[regs(o) for o in c.ops[1:3]])
                    if wv & ab: n = max(n, 3)
                elif wv & (c.r | c.w): n = max(n, 3)
            if ("e",0) in p.w and c.dpp: n = max(n, 5)
        if c.cls in ("vmem","ds") and p.dl and wv & c.r: n = max(n, 3)
        if c.cls == "vmem" and ws & c.vmem_s: n = max(n, 5)
        if c.cls in ("vmem","ds") and p.trans and wv & c.r: n = max(n,1)
    if p.cls == "mfma":
        d12 = {8: 12, 4: 8}[p.passes]; d10 = {8: 10, 4: 6}[p.passes]; d7 = {8: 7, 4: 3}[p.passes]
        if c.cls == "mfma":
            if p.w & c.srcAB: n = max(n, d12)
            if p.w & c.srcC and not (p.w == c.srcC and p.passes == c.passes): n = max(n, d10)
            if p.w & c.w and not (p.w & c.srcC): n = max(n, 0)
        if c.cls == "valu":
            if p.w & (c.r | c.w): n = max(n, d12)
            if p.srcC & c.w: n = max(n, d7)
        if c.cls in ("vmem", "ds"):
            if p.w & (c.r | c.w): n = max(n, d12)
            if p.srcC & c.w: n = max(n, d7)
    if p.cls == "salu" and ("m",0) in p.w and c.cls == "vmem" and c.ldsdma: n = max(n, 1)
    if p.cls == "vmem" and p.storedata:
        if c.cls == "valu" and p.storedata & c.w: n = max(n, 2)
        elif c.cls in ("vmem","ds","mfma") and p.storedata & c.w: n = max(n, 1)
    return n

def deficit(hist, c):
    dist = 0; worst = 0
    for p in reversed(hist):
        if dist >= 13: break
        k = need(p, c) - dist
        if k > worst: worst = k
        dist += p.nop
    return worst

def fix(text, verbose=False):
    lines = text.split("\n")
    changed = True; it = 0; total = 0
    while changed:
        changed = False; it += 1
        P = [parse(l) for l in lines]
        labels = {l.strip()[:-1]: i for i, l in enumerate(lines) if l.strip().endswith(":") and not l.strip().startswith(";")}
        out = []; hist = []
        for i, (l, x) in enumerate(zip(lines, P)):
            if x is None:
                out.append(l); continue
            k = deficit(hist, x) if x.cls != "nop" else 0
            if x.cls == "branch":
                tgt = labels.get(x.ops[0])
                if tgt is not None:
                    kk = 0; j = tgt; cnt = 1
                    while j < len(lines) and cnt < 14:
                        y = P[j]; j += 1
                        if y is None: continue
                        dist = cnt
                        for p in reversed(hist):
                            if dist >= 13: break
                            kk = max(kk, need(p, y) - dist)
                            dist += p.nop
                        cnt += y.nop
                        if y.base in ("s_branch","s_endpgm"): break
                    k = max(k, kk)
            if k > 0:
                n = I(); n.cls = "nop"; n.nop = k; n.w = set(); n.r = set(); n.base="s_nop"; n.storedata=set()
                out.append(f"  s_nop {k-1}"); hist.append(n); changed = True; total += 1
                if verbose: print("nop", k, "before", x.text)
            out.append(l); hist.append(x)
            if x.base in ("s_branch", "s_endpgm"): hist = []
            hist = hist[-16:]
        lines = out
        if it > 8: break
    return "\n".join(lines)
```

```python
from base import *
QSCALE = (DH ** -0.5) * math.log2(math.e)
LW = 0
LX = 86016
LM = LX + 65536
LDS_A = LM + 2048

def phaseA(A, sc=""):
    RB, HH, TG = 48, 49, 50
    SOX, SOW, SLX = 51, 52, 53
    A.c("---- phase A: LN1 + QKV ----")
    A(f"s_and_b32 s4, s2, 7\ns_lshr_b32 s5, s2, 3")
    A(f"s_lshr_b32 s6, s5, 4\ns_lshl_b32 s4, s4, 1\ns_add_u32 s{RB}, s4, s6\ns_and_b32 s{HH}, s5, 15")
    A(f"s_lshl_b32 s{TG}, s{RB}, 2\ns_add_u32 s{TG}, s{TG}, s3")
    VXE, VXO, VW0 = 1, 2, 3
    VXA = 6
    VWA, VWB = 10, 11
    VONE, VSX, VSXX = 12, 13, 14
    VCS = 15
    VL16 = 18
    VT = 20
    ACC = 32
    XF = 80
    WF = 92
    XH = 128
    A(f"v_lshlrev_b32 v{VL16}, 4, v0")
    A(f"v_lshrrev_b32 v{VT}, 3, v0")
    A(f"v_and_b32 v{VT+1}, 7, v0")
    A(f"v_lshrrev_b32 v{VT+2}, 4, v0")
    A(f"v_xor_b32 v{VT+1}, v{VT+1}, v{VT+2}")
    A(f"v_mul_u32_u24 v{VT}, 896, v{VT}")
    A(f"v_lshl_add_u32 v{VXE}, v{VT+1}, 4, v{VT}")
    A(f"v_xor_b32 v{VXO}, 64, v{VXE}")
    A(f"v_lshrrev_b32 v{VT}, 2, v0")
    A(f"v_mul_u32_u24 v{VT}, 2688, v{VT}")
    A(f"v_and_b32 v{VT+1}, 3, v0")
    A(f"v_lshl_add_u32 v{VT}, v{VT+1}, 4, v{VT}")
    A(f"s_mul_i32 s4, s{HH}, 56\ns_and_b32 s4, s4, 0xfffffff0")
    A(f"v_add_u32 v{VW0}, s4, v{VT}")
    A(f"v_add_u32 v{VW0+1}, 896, v{VW0}")
    A(f"v_add_u32 v{VW0+2}, 1792, v{VW0}")
    A(f"s_mul_i32 s{SOX}, s{TG}, {32*896}")
    A(f"s_mul_i32 s{SOW}, s3, {16*2688}")
    A(f"s_lshl_b32 s{SLX}, s3, 14\ns_add_u32 s{SLX}, s{SLX}, {LX}")
    A(f"s_mul_i32 s6, s3, 3072")
    A("s_waitcnt lgkmcnt(0)")
    def ldW(g):
        for sec in range(3):
            A(f"s_add_u32 m0, s6, {LW + g*4*3072 + sec*1024}")
            if sec == 0 and g > 0: A(f"s_add_u32 s{SOW}, s{SOW}, {64*2688}")
            else: A("s_nop 0")
            A(f"buffer_load_dwordx4 v{VW0+sec}, {s(SWQKV,4)}, s{SOW} offen lds")
    def ldX(g):
        for q in range(4):
            vo = VXE if q % 2 == 0 else VXO
            if g < 4:
                A(f"s_add_u32 m0, s{SLX}, {g*4096 + q*1024}")
                A(f"s_add_u32 s7, s{SOX}, {q*8*896 + g*128}")
                A(f"buffer_load_dwordx4 v{vo}, {s(SX,4)}, s7 offen lds")
            else:
                A(f"s_add_u32 s7, s{SOX}, {q*8*896}")
                A(f"buffer_load_dwordx4 {v(XH + (g-4)*16 + q*4, 4)}, v{vo}, {s(SX,4)}, s7 offen offset:{g*128}")
    order = []
    cum = []
    n = 0
    for g in range(7):
        ldW(g); n += 3
        if g < 3: ldX(g); n += 4
        elif g == 3: ldX(3); ldX(4); n += 8
        elif g < 6: ldX(g+1); n += 4
        cum.append(n)
    NV = n
    A(f"v_and_b32 v{VT}, 31, v0")
    A(f"v_lshrrev_b32 v{VT+1}, 5, v0")
    A(f"v_bfe_u32 v{VT+2}, v0, 1, 3")
    A(f"v_xor_b32 v{VT+2}, v{VT+2}, v{VT+1}")
    A(f"v_lshlrev_b32 v{VT+3}, 7, v{VT}")
    A(f"v_add_u32 v{VT+3}, s{SLX}, v{VT+3}")
    for sp in range(4):
        A(f"v_xor_b32 v{VT+4}, {2*sp}, v{VT+2}")
        A(f"v_lshl_add_u32 v{VXA+sp}, v{VT+4}, 4, v{VT+3}")
    A(f"v_bfe_u32 v{VT+4}, v0, 2, 2")
    A(f"v_lshl_add_u32 v{VT+4}, v{VT+1}, 3, v{VT+4}")
    A(f"v_lshlrev_b32 v{VT+4}, 6, v{VT+4}")
    A(f"v_bfe_u32 v{VT+5}, v0, 4, 1")
    A(f"v_lshl_add_u32 v{VT+4}, v{VT+5}, 5, v{VT+4}")
    A(f"v_and_b32 v{VT+5}, 3, v0")
    A(f"v_lshl_add_u32 v{VT+4}, v{VT+5}, 3, v{VT+4}")
    A(f"s_and_b32 s4, s{HH}, 1\ns_lshl_b32 s4, s4, 3")
    A(f"v_add_u32 v{VWA}, s4, v{VT+4}")
    A(f"v_add_u32 v{VWB}, {14*3072}, v{VWA}")
    A(f"v_mov_b32 v{VONE}, 0x3f803f80")
    for r in (VSX, VSXX, VCS, VCS+1, VCS+2): A(f"v_mov_b32 v{r}, 0")
    A(f"v_lshlrev_b32 v{VT+6}, 3, v0")
    A(f"v_mov_b32 v{VT+8}, 0\nv_mov_b32 v{VT+9}, 0")
    A(f"v_add_u32 v{VT+6}, {LM}, v{VT+6}")
    A(f"ds_write_b64 v{VT+6}, {v(VT+8,2)}")
    def reads(ks):
        g, sp = divmod(ks, 4); b = ks % 3
        A(f"ds_read_b128 {v(XF+4*b,4)}, v{VXA+sp} offset:{(g%4)*4096}")
        for sec in range(3):
            for t in range(2):
                kk = ks if ks < 14 else ks - 14
                A(f"ds_read_b64_tr_b16 {v(WF+12*b+4*sec+2*t,2)}, v{VWA if ks<14 else VWB} offset:{(kk*3+sec)*1024 + t*256}")
    def gate(g):
        A(f"s_waitcnt vmcnt({NV-cum[g]})")
        A("s_barrier")
    def xwrite(g):
        for q in range(4):
            A(f"ds_write_b128 v{VT+7}, {v(XH+(g-4)*16+q*4,4)} offset:{(g-4)*4096+q*1024}")
    A(f"v_add_u32 v{VT+7}, s{SLX}, v{VL16}")
    gate(0)
    reads(0); reads(1)
    for ks in range(28):
        b = ks % 3
        nw = 0
        if ks + 2 < 28:
            if (ks + 2) % 4 == 0:
                gate((ks + 2) // 4)
            A(f"s_waitcnt lgkmcnt(7)")
            if (ks + 2) % 4 == 0 and 3 <= (ks + 2)//4 <= 5:
                xwrite((ks + 2)//4 + 1)
            reads(ks + 2)
        elif ks == 26: A("s_waitcnt lgkmcnt(7)")
        else: A("s_waitcnt lgkmcnt(0)")
        cz = "0" if ks == 0 else None
        A.mfma(ACC, WF+12*b, XF+4*b, cz)
        for j in range(4): A(f"v_dot2c_f32_bf16 v{VSXX}, v{XF+4*b+j}, v{XF+4*b+j}")
        A.mfma(ACC+16, WF+12*b+4, XF+4*b, cz)
        for j in range(4): A(f"v_dot2c_f32_bf16 v{VSX}, v{XF+4*b+j}, v{VONE}")
        A.mfma(ACC+32, XF+4*b, WF+12*b+8, cz)
        lab = A.newlab("Acs")
        A(f"s_cmp_lg_u32 s3, {ks%4}\ns_cbranch_scc1 {lab}")
        for j in range(4):
            for sec in range(3):
                A(f"v_dot2c_f32_bf16 v{VCS+sec}, v{WF+12*b+4*sec+j}, v{VONE}")
        A.lab(lab)
    T = 128
    A(f"v_and_b32 v{VT}, 31, v0")
    A(f"v_lshlrev_b32 v{VT}, 2, v{VT}")
    A(f"v_add_u32 v{VT+1}, {LM}, v{VT}")
    for sec in range(3): A(f"ds_add_f32 v{VT+1}, v{VCS+sec} offset:{sec*128}")
    A(f"v_mov_b32 v{T}, v{VSX}\nv_mov_b32 v{T+1}, v{VSXX}")
    A(f"v_permlane32_swap_b32 v{VSX}, v{T}\nv_permlane32_swap_b32 v{VSXX}, v{T+1}")
    A(f"v_add_f32 v{VSX}, v{VSX}, v{T}\nv_add_f32 v{VSXX}, v{VSXX}, v{T+1}")
    A(f"v_mul_f32 v{VSX}, {fhex(1.0/D)}, v{VSX}")
    A(f"v_mul_f32 v{T}, v{VSX}, v{VSX}")
    A(f"v_mul_f32 v{VSXX}, {fhex(1.0/D)}, v{VSXX}")
    A(f"v_sub_f32 v{VSXX}, v{VSXX}, v{T}")
    A(f"v_max_f32 v{VSXX}, 0, v{VSXX}")
    A(f"v_add_f32 v{VSXX}, {fhex(1e-5)}, v{VSXX}")
    R_, MR = T+2, T+3
    A(f"v_rsq_f32 v{R_}, v{VSXX}")
    A(f"s_lshl_b32 s4, s3, 8\ns_add_u32 s4, s4, {LM+512}")
    A(f"v_mul_f32 v{MR}, v{VSX}, v{R_}")
    A(f"v_add_u32 v{VT+2}, s4, v{VT}")
    A(f"ds_write_b32 v{VT+2}, v{R_}\nds_write_b32 v{VT+2}, v{MR} offset:128")
    A(f"v_lshrrev_b32 v{VT+3}, 5, v0\nv_lshlrev_b32 v{VT+3}, 4, v{VT+3}")
    A(f"v_add_u32 v{VT+4}, s4, v{VT+3}")
    A(f"v_add_u32 v{VT+3}, {LM}, v{VT+3}")
    A("s_waitcnt lgkmcnt(0)\ns_barrier")
    CQ, CK, SR, SM, CV = T+8, T+24, T+40, T+56, T+4
    for g in range(4): A(f"ds_read_b128 {v(CQ+4*g,4)}, v{VT+3} offset:{g*32}")
    for g in range(4): A(f"ds_read_b128 {v(CK+4*g,4)}, v{VT+3} offset:{128+g*32}")
    A(f"ds_read_b32 v{CV}, v{VT+1} offset:256")
    for g in range(4): A(f"ds_read_b128 {v(SR+4*g,4)}, v{VT+4} offset:{g*32}")
    RQ, MRQ = T+6, T+7
    A(f"v_mul_f32 v{RQ}, {fhex(QSCALE)}, v{R_}\nv_mul_f32 v{MRQ}, {fhex(QSCALE)}, v{MR}")
    PK = 80
    def qk(acc, cs, rr, mr, out):
        for p in range(8):
            A(f"v_pk_mul_f32 {v(acc+2*p,2)}, {v(acc+2*p,2)}, {v(rr&~1,2)} op_sel:[0,{rr&1}] op_sel_hi:[1,{rr&1}]")
        for p in range(8):
            A(f"v_pk_fma_f32 {v(acc+2*p,2)}, {v(cs+2*p,2)}, {v(mr&~1,2)}, {v(acc+2*p,2)} op_sel:[0,{mr&1},0] op_sel_hi:[1,{mr&1},1] neg_lo:[1,0,0] neg_hi:[1,0,0]")
        for p in range(8):
            A(f"v_cvt_pk_bf16_f32 v{out+p}, v{acc+2*p}, v{acc+2*p+1}")
    A("s_waitcnt lgkmcnt(9)")
    qk(ACC, CQ, RQ, MRQ, PK)
    for g in range(4): A(f"ds_read_b128 {v(SM+4*g,4)}, v{VT+4} offset:{128+g*32}")
    A("s_waitcnt lgkmcnt(9)")
    qk(ACC+16, CK, R_, MR, PK+8)
    A("s_waitcnt lgkmcnt(0)")
    acc = ACC+32
    for p in range(8):
        A(f"v_pk_mul_f32 {v(acc+2*p,2)}, {v(acc+2*p,2)}, {v(SR+2*p,2)}")
    for p in range(8):
        A(f"v_pk_fma_f32 {v(acc+2*p,2)}, {v(SM+2*p,2)}, {v(CV&~1,2)}, {v(acc+2*p,2)} op_sel:[0,{CV&1},0] op_sel_hi:[1,{CV&1},1] neg_lo:[1,0,0] neg_hi:[1,0,0]")
    for p in range(8):
        A(f"v_cvt_pk_bf16_f32 v{PK+16+p}, v{acc+2*p}, v{acc+2*p+1}")
    A("s_mov_b32 exec_lo, 0")
    for r in (PK+6, PK+7): A(f"v_mov_b32 v{r}, 0")
    A(f"v_mov_b32 v{PK+14}, v{VONE}\nv_mov_b32 v{PK+15}, 0x3f80")
    A("s_mov_b32 exec_lo, 0xe0000000\ns_mov_b32 exec_hi, 0xe0000000")
    for p in range(8): A(f"v_mov_b32 v{PK+16+p}, 0")
    A("s_mov_b32 exec_lo, 0x10000000\ns_mov_b32 exec_hi, 0x10000000")
    for p in range(8): A(f"v_mov_b32 v{PK+16+p}, v{VONE}")
    A("s_mov_b64 exec, -1")
    A(f"s_lshl_b32 s4, s{HH}, 6\ns_add_u32 s4, s4, s{TG}")
    A(f"s_lshl_b32 s5, s4, 11\ns_lshl_b32 s6, s4, 12\ns_add_u32 s6, s6, {KV}")
    for i in range(2): A(f"buffer_store_dwordx4 {v(PK+4*i,4)}, v{VL16}, {s(SWS,4)}, s5 offen offset:{1024*i} {sc}")
    for i in range(4): A(f"buffer_store_dwordx4 {v(PK+8+4*i,4)}, v{VL16}, {s(SWS,4)}, s6 offen offset:{1024*i} {sc}")
    N = T
    for i in range(3): A(f"v_mov_b32 v{N+i}, 0")
    for p in range(8):
        for i in range(3): A(f"v_dot2c_f32_bf16 v{N+i}, v{PK+8*i+p}, v{PK+8*i+p}")
    for i in range(2): A(f"v_mov_b32 v{N+4+i}, v{N+i}")
    for i in range(2): A(f"v_permlane32_swap_b32 v{N+i}, v{N+4+i}")
    for i in range(2): A(f"v_add_f32 v{N+i}, v{N+i}, v{N+4+i}")
    A(f"v_mov_b32 v{VT}, {LM+384}")
    for i in range(3): A(f"ds_max_u32 v{VT}, v{N+i} offset:{4*i+4}")
    A("s_waitcnt lgkmcnt(0)\ns_barrier")
    return dict(RB=RB, HH=HH, VT=VT)

def phaseA_nrm_store(A, m, sc=""):
    VT = m["VT"]
    lab = A.newlab("Anrm")
    A(f"s_cmp_lg_u32 s3, 0\ns_cbranch_scc1 {lab}")
    A(f"ds_read_b128 {v(VT+2,4)}, v{VT}")
    A(f"s_lshl_b32 s4, s{m['HH']}, 4\ns_add_u32 s4, s4, s{m['RB']}\ns_lshl_b32 s4, s4, 4\ns_add_u32 s4, s4, {NRM}")
    A(f"v_mov_b32 v{VT+6}, 0")
    A("s_mov_b64 exec, 1")
    A("s_waitcnt lgkmcnt(0)")
    A(f"buffer_store_dwordx4 {v(VT+2,4)}, v{VT+6}, {s(SWS,4)}, s4 offen {sc}")
    A("s_mov_b64 exec, -1")
    A.lab(lab)
```

```python
from base import *
LDS_B = 49152 + 4096
def phaseB(A, sc="", ldsc=""):
    HH, QB, SKV, TI, CNT, SQ = 48, 49, 50, 51, 52, 53
    VL16, VT = 18, 20
    Q, SB, P, R, O = 32, 64, 96, 112, 176
    A.c("---- phase B: attention ----")
    A(f"s_and_b32 s4, s2, 7\ns_lshr_b32 s5, s2, 3")
    A(f"s_and_b32 s6, s5, 1\ns_lshl_b32 s4, s4, 1\ns_add_u32 s{HH}, s4, s6\ns_lshr_b32 s{QB}, s5, 1")
    A(f"v_lshlrev_b32 v{VL16}, 4, v0")
    A(f"v_and_b32 v{VT}, 15, v0\nv_lshlrev_b32 v{VT}, 4, v{VT}")
    A(f"s_lshl_b32 s4, s{HH}, 8\ns_add_u32 s4, s4, {NRM}")
    A(f"s_lshl_b32 s{SKV}, s{HH}, 2\ns_add_u32 s{SKV}, s{SKV}, s3\ns_lshl_b32 s{SKV}, s{SKV}, 16\ns_add_u32 s{SKV}, s{SKV}, {KV}")
    A(f"s_lshl_b32 s{SQ}, s{HH}, 4\ns_add_u32 s{SQ}, s{SQ}, s{QB}\ns_lshl_b32 s{SQ}, s{SQ}, 13")
    A(f"s_mov_b32 s{TI}, s{QB}")
    A("s_waitcnt lgkmcnt(0)")
    A(f"buffer_load_dwordx4 {v(VT+4,4)}, v{VT}, {s(SWS,4)}, s4 offen {ldsc}")
    def ldkv(slot):
        A(f"s_lshl_b32 s4, s{TI}, 12\ns_add_u32 s4, s4, s{SKV}")
        for i in range(4): A(f"buffer_load_dwordx4 {v(R+16*slot+4*i,4)}, v{VL16}, {s(SWS,4)}, s4 offen offset:{1024*i} {ldsc}")
        A(f"s_add_u32 s{TI}, s{TI}, 1\ns_and_b32 s{TI}, s{TI}, 15")
    for j in range(4):
        A(f"s_add_u32 s4, s3, {j}\ns_and_b32 s4, s4, 3\ns_lshl_b32 s4, s4, 11\ns_add_u32 s4, s4, s{SQ}")
        for i in range(2): A(f"buffer_load_dwordx4 {v(Q+8*j+4*i,4)}, v{VL16}, {s(SWS,4)}, s4 offen offset:{1024*i} {ldsc}")
    for t in range(3): ldkv(t)
    for i in range(64): A(f"v_mov_b32 v{O+i}, 0")
    for i in range(8): A(f"v_mov_b32 v{P+8+i}, 0\nv_mov_b32 v{R+48+8+i}, 0")
    A("s_waitcnt vmcnt(20)")
    for st in (8, 4, 2, 1):
        for i in range(3): A(f"v_max_u32_dpp v{VT+5+i}, v{VT+5+i}, v{VT+5+i} row_ror:{st} row_mask:0xf bank_mask:0xf")
    A(f"v_mul_f32 v{VT+5}, v{VT+5}, v{VT+6}")
    A(f"v_mov_b32 v{VT+6}, {fhex(4000.0)}\nv_mov_b32 v{VT+4}, {fhex(2.0**96)}")
    A(f"v_cmp_ge_f32 vcc, v{VT+6}, v{VT+5}\nv_cmp_ge_f32 s[4:5], v{VT+4}, v{VT+7}")
    A("s_and_b64 vcc, vcc, s[4:5]")
    fast = A.newlab("Bfast")
    A(f"s_cmp_eq_u64 vcc, -1\ns_cbranch_scc1 {fast}")
    M = SB + 24
    KT = SB + 16
    for j in range(4): A(f"v_mov_b32 v{M+j}, {fhex(float('-inf'))}")
    A(f"s_mov_b32 s{CNT}, 0")
    lp = A.newlab("Bmax"); A.lab(lp)
    A(f"s_lshl_b32 s4, s{CNT}, 12\ns_add_u32 s4, s4, s{SKV}")
    for i in range(2): A(f"buffer_load_dwordx4 {v(KT+4*i,4)}, v{VL16}, {s(SWS,4)}, s4 offen offset:{1024*i} {ldsc}")
    A("s_waitcnt vmcnt(0)")
    for j in range(4):
        A.mfma(SB, KT, Q+8*j, "0"); A.mfma(SB, KT+4, Q+8*j+4)
        for p in range(8): A(f"v_max3_f32 v{M+j}, v{SB+2*p}, v{SB+2*p+1}, v{M+j}")
    A(f"s_add_u32 s{CNT}, s{CNT}, 1\ns_cmp_lt_u32 s{CNT}, 16\ns_cbranch_scc1 {lp}")
    A(f"v_lshlrev_b32 v{VT}, 2, v0")
    for j in range(4):
        A(f"s_add_u32 s4, s3, {j}\ns_and_b32 s4, s4, 3\ns_lshl_b32 s4, s4, 2\ns_add_u32 s4, s4, s3\ns_lshl_b32 s4, s4, 8\ns_add_u32 s4, s4, 49152")
        A(f"v_add_u32 v{VT+1}, s4, v{VT}")
        A(f"ds_write_b32 v{VT+1}, v{M+j}")
    A("s_waitcnt lgkmcnt(0)\ns_barrier")
    A(f"v_and_b32 v{VT}, 31, v0\nv_lshlrev_b32 v{VT}, 2, v{VT}")
    for j in range(4):
        A(f"s_add_u32 s4, s3, {j}\ns_and_b32 s4, s4, 3\ns_lshl_b32 s4, s4, 10\ns_add_u32 s4, s4, 49152")
        A(f"v_add_u32 v{VT+1}, s4, v{VT}")
        for w in range(8): A(f"ds_read_b32 v{SB+w}, v{VT+1} offset:{128*w}")
        A("s_waitcnt lgkmcnt(0)")
        A(f"v_max3_f32 v{SB}, v{SB}, v{SB+1}, v{SB+2}\nv_max3_f32 v{SB+3}, v{SB+3}, v{SB+4}, v{SB+5}\nv_max3_f32 v{SB}, v{SB}, v{SB+6}, v{SB+7}")
        A(f"v_max_f32 v{SB}, v{SB}, v{SB+3}")
        A(f"v_sub_f32 v{SB}, 0, v{SB}")
        A(f"v_cvt_pk_bf16_f32 v{SB+1}, v{SB}, v{SB}\nv_and_b32 v{SB+2}, 0xffff0000, v{SB+1}\nv_sub_f32 v{SB}, v{SB}, v{SB+2}")
        A(f"v_cvt_pk_bf16_f32 v{SB+3}, v{SB}, v{SB}\nv_and_b32 v{SB+4}, 0xffff0000, v{SB+3}\nv_sub_f32 v{SB}, v{SB}, v{SB+4}")
        A(f"v_cvt_pk_bf16_f32 v{SB+5}, v{SB}, v{SB}")
        A("s_mov_b32 exec_lo, 0")
        A(f"v_and_b32 v{SB+1}, 0xffff, v{SB+1}\nv_or_b32 v{Q+8*j+6}, v{SB+1}, v{SB+4}\nv_and_b32 v{Q+8*j+7}, 0xffff, v{SB+5}")
        A("s_mov_b32 exec_lo, -1")
    A.lab(fast)
    A("s_waitcnt vmcnt(8)")
    A.mfma(SB, R, Q, "0"); A.mfma(SB, R+4, Q+4)
    A(f"s_mov_b32 s{CNT}, 0")
    A("s_nop 7\ns_nop 3")
    lp = A.newlab("Bloop"); A.lab(lp)
    for t in range(4):
        for j in range(4):
            u = 4*t + j
            cur, nxt = SB + 16*(u % 2), SB + 16*((u+1) % 2)
            pc, pp = P + 8*(u % 2), P + 8*((u+1) % 2)
            nt, nj = (t, j+1) if j < 3 else ((t+1) % 4, 0)
            pt, pj = (t, j-1) if j > 0 else ((t-1) % 4, 3)
            if j == 3: A("s_waitcnt vmcnt(8)")
            A.mfma(nxt, R+16*nt, Q+8*nj, "0")
            for i in range(0, 4): A(f"v_exp_f32 v{cur+i}, v{cur+i}")
            A.mfma(nxt, R+16*nt+4, Q+8*nj+4)
            for i in range(4, 8): A(f"v_exp_f32 v{cur+i}, v{cur+i}")
            for p in range(0, 2): A(f"v_cvt_pk_bf16_f32 v{pc+p}, v{cur+2*p}, v{cur+2*p+1}")
            A.mfma(O+16*pj, R+16*pt+8, pp)
            for i in range(8, 12): A(f"v_exp_f32 v{cur+i}, v{cur+i}")
            for p in range(2, 4): A(f"v_cvt_pk_bf16_f32 v{pc+p}, v{cur+2*p}, v{cur+2*p+1}")
            A.mfma(O+16*pj, R+16*pt+12, pp+4)
            if j == 1: ldkv((t+3) % 4)
            for i in range(12, 16): A(f"v_exp_f32 v{cur+i}, v{cur+i}")
            for p in range(4, 8): A(f"v_cvt_pk_bf16_f32 v{pc+p}, v{cur+2*p}, v{cur+2*p+1}")
    A(f"s_add_u32 s{CNT}, s{CNT}, 1\ns_cmp_lt_u32 s{CNT}, 4\ns_cbranch_scc1 {lp}")
    A.mfma(O+48, R+48+8, P+8); A.mfma(O+48, R+48+12, P+12)
    for j in range(1, 4):
        A(f"s_add_u32 s4, s3, {j}\ns_and_b32 s4, s4, 3\ns_mul_i32 s4, s4, 12288\ns_add_u32 s4, s4, {(j-1)*4096}")
        A(f"v_add_u32 v{VT+j}, s4, v{VL16}")
        for g in range(4): A(f"ds_write_b128 v{VT+j}, {v(O+16*j+4*g,4)} offset:{1024*g}")
    A(f"s_mul_i32 s4, s3, 12288\nv_add_u32 v{VT}, s4, v{VL16}")
    A("s_waitcnt lgkmcnt(0)\ns_barrier")
    T = SB
    for j in range(3):
        for g in range(4): A(f"ds_read_b128 {v(T+16*j+4*g,4)}, v{VT} offset:{4096*j+1024*g}")
    for j in range(3):
        A(f"s_waitcnt lgkmcnt({8-4*j})")
        for p in range(8): A(f"v_pk_add_f32 {v(O+2*p,2)}, {v(O+2*p,2)}, {v(T+16*j+2*p,2)}")
    A(f"v_mov_b32 v{VT+2}, v{O+12}\nv_mov_b32 v{VT+3}, v{O+12}")
    A(f"v_permlane32_swap_b32 v{VT+2}, v{VT+3}")
    A(f"v_rcp_f32 v{VT+2}, v{VT+3}")
    for p in range(8): A(f"v_pk_mul_f32 {v(O+2*p,2)}, {v(O+2*p,2)}, {v(VT+2,2)} op_sel:[0,0] op_sel_hi:[1,0]")
    for p in range(8): A(f"v_cvt_pk_bf16_f32 v{T+p}, v{O+2*p}, v{O+2*p+1}")
    A("s_mov_b32 exec_lo, 0")
    A(f"v_mov_b32 v{T+6}, 0\nv_mov_b32 v{T+7}, 0")
    A("s_mov_b32 exec_lo, -1")
    A(f"s_lshl_b32 s4, s{QB}, 2\ns_add_u32 s4, s4, s3\ns_lshl_b32 s4, s4, 4\ns_add_u32 s4, s4, s{HH}\ns_lshl_b32 s4, s4, 11\ns_add_u32 s4, s4, {OF}")
    for i in range(2): A(f"buffer_store_dwordx4 {v(T+4*i,4)}, v{VL16}, {s(SWS,4)}, s4 offen offset:{1024*i} {sc}")
```

```python
from base import *
LDS_C = 32768
def tr_addr(A, dst, t0, rowB):
    A(f"v_bfe_u32 v{t0}, v0, 2, 2")
    A(f"v_lshrrev_b32 v{t0+1}, 5, v0")
    A(f"v_lshl_add_u32 v{t0}, v{t0+1}, 2, v{t0}")
    A(f"v_mul_u32_u24 v{t0}, {rowB}, v{t0}")
    A(f"v_bfe_u32 v{t0+1}, v0, 4, 1")
    A(f"v_lshl_add_u32 v{t0}, v{t0+1}, 5, v{t0}")
    A(f"v_and_b32 v{t0+1}, 3, v0")
    A(f"v_lshl_add_u32 v{dst}, v{t0+1}, 3, v{t0}")

def phaseC(A, endlab, sc="", ldsc=""):
    RB, NB, TG = 48, 49, 50
    VL16, VT = 18, 20
    csj = A.newlab("Ccs")
    A.c("---- phase C: h = x + o@wo ----")
    A(f"v_lshlrev_b32 v{VL16}, 4, v0")
    A(f"s_cmp_ge_u32 s2, 224\ns_cbranch_scc1 {csj}")
    A(f"s_and_b32 s4, s2, 7\ns_lshr_b32 s5, s2, 3\ns_lshl_b32 s{RB}, s4, 1")
    A(f"s_cmp_ge_u32 s5, 14\ns_cselect_b32 s6, 14, 0\ns_cselect_b32 s7, 1, 0\ns_sub_u32 s{NB}, s5, s6\ns_add_u32 s{RB}, s{RB}, s7")
    A(f"s_lshl_b32 s{TG}, s{RB}, 2\ns_add_u32 s{TG}, s{TG}, s3")
    VW, VX, VTR = 1, 2, 3
    ACC, XR, WF, OFR = 32, 48, 56, 64
    A(f"v_lshrrev_b32 v{VT}, 2, v0\nv_mul_u32_u24 v{VT}, 896, v{VT}\nv_and_b32 v{VT+1}, 3, v0\nv_lshl_add_u32 v{VW}, v{VT+1}, 4, v{VT}")
    A(f"v_and_b32 v{VT}, 31, v0\nv_mul_u32_u24 v{VT}, 896, v{VT}\nv_lshrrev_b32 v{VT+1}, 5, v0\nv_lshl_add_u32 v{VX}, v{VT+1}, 3, v{VT}")
    A(f"s_lshr_b32 s4, s3, 1\ns_mul_i32 s4, s4, 28\ns_and_b32 s5, s3, 1\ns_lshl_b32 s5, s5, 4\ns_add_u32 s4, s4, s5\ns_mul_i32 s4, s4, 896")
    A(f"s_lshl_b32 s5, s{NB}, 6\ns_add_u32 s4, s4, s5")
    A(f"s_mul_i32 s6, s{TG}, {32*896}\ns_add_u32 s6, s6, s5")
    A(f"s_lshl_b32 s7, s{TG}, 15\ns_add_u32 s7, s7, {OF}")
    A(f"s_lshl_b32 s5, s3, 10")
    A("s_waitcnt lgkmcnt(0)")
    for i in range(8):
        A(f"s_add_u32 m0, s5, {4096*i}")
        if i: A(f"s_add_u32 s4, s4, {56*896}")
        A(f"buffer_load_dwordx4 v{VW}, {s(SWO,4)}, s4 offen lds")
    for g in range(4): A(f"buffer_load_dwordx2 {v(XR+2*g,2)}, v{VX}, {s(SX,4)}, s6 offen offset:{16*g}")
    for ks in range(32):
        if ks and ks % 4 == 0: A(f"s_add_u32 s7, s7, 4096")
        A(f"buffer_load_dwordx4 {v(OFR+4*ks,4)}, v{VL16}, {s(SWS,4)}, s7 offen offset:{1024*(ks%4)} {ldsc}")
    tr_addr(A, VTR, VT, 64)
    A("s_waitcnt vmcnt(32)")
    for p in range(8):
        A(f"v_lshlrev_b32 v{ACC+2*p}, 16, v{XR+p}\nv_and_b32 v{ACC+2*p+1}, 0xffff0000, v{XR+p}")
    A("s_barrier")
    WFB = [192, 196, 200, 204]
    def rd(ks):
        for t in range(2): A(f"ds_read_b64_tr_b16 {v(WFB[ks%4]+2*t,2)}, v{VTR} offset:{ks*1024+t*512}")
    rd(0); rd(1); rd(2)
    for ks in range(32):
        if ks + 3 < 32: rd(ks + 3)
        A(f"s_waitcnt vmcnt({31-ks}) lgkmcnt({2*min(3, 31-ks)})")
        A.mfma(ACC, WFB[ks%4], OFR+4*ks)
    PK = 48
    A(f"v_mov_b32 v{VT}, 0\nv_mov_b32 v{VT+1}, 0\nv_mov_b32 v{VT+4}, 0x3f803f80")
    A(f"s_mul_i32 s4, s{TG}, 28\ns_lshl_b32 s5, s{NB}, 1\ns_add_u32 s4, s4, s5\ns_lshl_b32 s4, s4, 10\ns_add_u32 s4, s4, {HF}")
    A(f"s_mul_i32 s5, s{TG}, 14\ns_add_u32 s5, s5, s{NB}\ns_lshl_b32 s5, s5, 8\ns_add_u32 s5, s5, {ST2}")
    A(f"v_lshlrev_b32 v{VT+5}, 3, v0")
    for p in range(8): A(f"v_cvt_pk_bf16_f32 v{PK+p}, v{ACC+2*p}, v{ACC+2*p+1}")
    for i in range(2): A(f"buffer_store_dwordx4 {v(PK+4*i,4)}, v{VL16}, {s(SWS,4)}, s4 offen offset:{1024*i} {sc}")
    for p in range(8):
        A(f"v_dot2c_f32_bf16 v{VT}, v{PK+p}, v{VT+4}\nv_dot2c_f32_bf16 v{VT+1}, v{PK+p}, v{PK+p}")
    A(f"v_mov_b32 v{VT+2}, v{VT}\nv_mov_b32 v{VT+3}, v{VT+1}")
    A(f"v_permlane32_swap_b32 v{VT}, v{VT+2}\nv_permlane32_swap_b32 v{VT+1}, v{VT+3}")
    A(f"v_pk_add_f32 {v(VT,2)}, {v(VT,2)}, {v(VT+2,2)}")
    A("s_mov_b32 exec_hi, 0")
    A(f"buffer_store_dwordx2 {v(VT,2)}, v{VT+5}, {s(SWS,4)}, s5 offen {sc}")
    A("s_mov_b32 exec_hi, -1")
    A(f"s_branch {endlab}")
    A.lab(csj)
    A(f"s_sub_u32 s{NB}, s2, 224")
    A(f"v_lshrrev_b32 v{VT}, 3, v0\nv_mul_u32_u24 v{VT}, 3584, v{VT}\nv_and_b32 v{VT+1}, 7, v0\nv_lshl_add_u32 v1, v{VT+1}, 4, v{VT}")
    A(f"s_mul_i32 s4, s3, {112*3584}\ns_lshl_b32 s5, s{NB}, 7\ns_add_u32 s4, s4, s5")
    A(f"v_lshlrev_b32 v2, 1, v0\nv_lshlrev_b32 v3, 2, v0\nv_mov_b32 v4, 0")
    A("s_waitcnt lgkmcnt(0)")
    for i in range(14):
        if i: A(f"s_add_u32 s4, s4, {8*3584}")
        A(f"buffer_load_dwordx4 {v(64+4*i,4)}, v1, {s(SW1,4)}, s4 offen")
    A(f"buffer_load_ushort v5, v2, {s(SB1,4)}, s5 offen")
    A(f"ds_write_b32 v3, v4")
    for i in range(8): A(f"v_mov_b32 v{32+i}, 0")
    A(f"v_mov_b32 v6, 0x3f80\nv_mov_b32 v7, 0x3f800000")
    A("s_waitcnt lgkmcnt(0)\ns_barrier")
    for i in range(14):
        A(f"s_waitcnt vmcnt({14-i})")
        for j in range(4):
            A(f"v_dot2c_f32_bf16 v{32+2*j}, v{64+4*i+j}, v6\nv_dot2c_f32_bf16 v{33+2*j}, v{64+4*i+j}, v7")
    A(f"v_lshlrev_b32 v8, 5, v{VT+1}")
    for i in range(8): A(f"ds_add_f32 v8, v{32+i} offset:{4*i}")
    A("s_waitcnt lgkmcnt(0)\ns_barrier")
    A(f"s_cmp_lg_u32 s3, 0\ns_cbranch_scc1 {endlab}")
    A("ds_read_b32 v4, v3")
    A(f"s_lshl_b32 s4, s{NB}, 8\ns_add_u32 s4, s4, {CS1}\ns_add_u32 s5, s4, 8192")
    A("s_waitcnt vmcnt(0) lgkmcnt(0)")
    A("v_lshlrev_b32 v5, 16, v5")
    A(f"buffer_store_dword v4, v3, {s(SWS,4)}, s4 offen {sc}")
    A(f"buffer_store_dword v5, v3, {s(SWS,4)}, s5 offen {sc}")
```

```python
from base import *
from phC import tr_addr
LD_W = 0; LD_CB = 114688
LDS_D = LD_CB + 1024
C0 = -2.0*math.sqrt(2.0/math.pi)*math.log2(math.e); C1 = C0*0.044715
def gelu_list(acc, cs, b1, tmp, pk, RR, CC, ONE):
    L = []
    for half in range(2):
        ps = range(4*half, 4*half+4)
        for p in ps: L.append(f"v_pk_fma_f32 {v(b1+2*p,2)}, {v(cs+2*p,2)}, {v(RR,2)}, {v(b1+2*p,2)} op_sel:[0,1,0] op_sel_hi:[1,1,1] neg_lo:[1,0,0] neg_hi:[1,0,0]")
        for p in ps: L.append(f"v_pk_fma_f32 {v(acc+2*p,2)}, {v(acc+2*p,2)}, {v(RR,2)}, {v(b1+2*p,2)} op_sel:[0,0,0] op_sel_hi:[1,0,1]")
        for p in ps: L.append(f"v_pk_mul_f32 {v(tmp+2*(p%4),2)}, {v(acc+2*p,2)}, {v(acc+2*p,2)}")
        for p in ps: L.append(f"v_pk_fma_f32 {v(tmp+2*(p%4),2)}, {v(tmp+2*(p%4),2)}, {v(CC,2)}, {v(CC,2)} op_sel:[0,1,0] op_sel_hi:[1,1,0]")
        for p in ps: L.append(f"v_pk_mul_f32 {v(tmp+2*(p%4),2)}, {v(tmp+2*(p%4),2)}, {v(acc+2*p,2)}")
        for i in range(8): L.append(f"v_exp_f32 v{tmp+i}, v{tmp+i}")
        for p in ps: L.append(f"v_pk_add_f32 {v(tmp+2*(p%4),2)}, {v(tmp+2*(p%4),2)}, {v(ONE,2)}")
        for i in range(8): L.append(f"v_rcp_f32 v{tmp+i}, v{tmp+i}")
        for p in ps: L.append(f"v_pk_mul_f32 {v(acc+2*p,2)}, {v(acc+2*p,2)}, {v(tmp+2*(p%4),2)}")
        for p in ps: L.append(f"v_cvt_pk_bf16_f32 v{pk+p}, v{acc+2*p}, v{acc+2*p+1}")
    return L

def phaseD(A, endlab, sc="", ldsc=""):
    RB, FB, TG, SO = 48, 49, 50, 51
    VL16, VT = 18, 20
    A.c("---- phase D: H1 = gelu(LN2(h)@w1 + b1) ----")
    A(f"s_cmp_ge_u32 s2, 224\ns_cbranch_scc1 {endlab}")
    A(f"v_lshlrev_b32 v{VL16}, 4, v0")
    A(f"s_and_b32 s4, s2, 7\ns_lshr_b32 s5, s2, 3\ns_lshl_b32 s{RB}, s4, 1")
    A(f"s_cmp_ge_u32 s5, 14\ns_cselect_b32 s6, 14, 0\ns_cselect_b32 s7, 1, 0\ns_sub_u32 s{FB}, s5, s6\ns_add_u32 s{RB}, s{RB}, s7")
    A(f"s_lshl_b32 s{TG}, s{RB}, 2\ns_add_u32 s{TG}, s{TG}, s3")
    VW, VS, VCB, VTR, VTR2, VCA = 1, 2, 3, 4, 5, 6
    RR, CC, ONE = 8, 10, 12
    ACC = 32
    WF = 96
    CS, B1, TMP, PK, ST = 112, 128, 144, 152, 160
    vm = Trk(A, "vmcnt", 63); ds = Trk(A, "lgkmcnt", 15)
    A(f"v_lshrrev_b32 v{VT}, 2, v0\nv_mul_u32_u24 v{VT}, 3584, v{VT}\nv_and_b32 v{VT+1}, 3, v0\nv_lshl_add_u32 v{VW}, v{VT+1}, 4, v{VT}")
    A(f"v_and_b32 v{VT}, 31, v0\nv_lshrrev_b32 v{VT+1}, 5, v0")
    A(f"v_lshlrev_b32 v{VT+2}, 8, v{VT+1}\nv_lshl_add_u32 v{VS}, v{VT}, 3, v{VT+2}")
    A(f"v_lshlrev_b32 v{VT+2}, 13, v{VT+1}\nv_lshl_add_u32 v{VCB}, v{VT}, 4, v{VT+2}")
    A(f"v_lshlrev_b32 v{VCA}, 4, v{VT+1}\nv_add_u32 v{VCA}, {LD_CB}, v{VCA}")
    A(f"s_mul_i32 s4, s3, {16*3584}\ns_lshl_b32 s5, s{FB}, 8\ns_add_u32 s{SO}, s4, s5")
    A(f"s_mul_i32 s6, s{TG}, {28*1024}\ns_add_u32 s6, s6, {HF}")
    A(f"s_lshl_b32 s5, s3, 10")
    A("s_waitcnt lgkmcnt(0)")
    def ldw(ft):
        for i in range(7):
            A(f"s_add_u32 m0, s5, {ft*28672 + i*4096}")
            A(f"s_add_u32 s4, s{SO}, {i*64*3584 + ft*64}")
            vm.issue(("w", ft), f"buffer_load_dwordx4 v{VW}, {s(SW1,4)}, s4 offen lds")
    ldw(0)
    for ks in range(28):
        if ks and ks % 4 == 0: A(f"s_add_u32 s6, s6, 4096")
        vm.issue(("h", ks), f"buffer_load_dwordx4 {a(4*ks,4)}, v{VL16}, {s(SWS,4)}, s6 offen offset:{1024*(ks%4)} {ldsc}")
    A(f"s_mul_i32 s6, s{TG}, {14*256}\ns_add_u32 s6, s6, {ST2}")
    for i in range(7): vm.issue("st", f"buffer_load_dwordx2 {v(ST+2*i,2)}, v{VS}, {s(SWS,4)}, s6 offen offset:{512*i} {ldsc}")
    A(f"s_mov_b32 m0, {LD_CB}\ns_lshl_b32 s6, s{FB}, 9\ns_add_u32 s6, s6, {CS1}")
    vm.issue(("w", 1), f"buffer_load_dwordx4 v{VCB}, {s(SWS,4)}, s6 offen lds {ldsc}")
    ldw(1); ldw(2)
    tr_addr(A, VTR, VT, 64)
    A(f"v_add_u32 v{VTR2}, {2*28672}, v{VTR}")
    A(f"v_mov_b32 v{CC}, {fhex(C0)}\nv_mov_b32 v{CC+1}, {fhex(C1)}\nv_mov_b32 v{ONE}, 1.0\nv_mov_b32 v{ONE+1}, 1.0")
    A(f"s_mul_i32 s6, s{TG}, 112\ns_lshl_b32 s7, s{FB}, 3\ns_add_u32 s6, s6, s7\ns_lshl_b32 s6, s6, 10\ns_add_u32 s6, s6, {H1}\ns_add_u32 s7, s6, 4096")
    def rd(st):
        ft, ks = divmod(st, 28)
        for t in range(2):
            ds.issue(("w", st), f"ds_read_b64_tr_b16 {v(WF+4*(st%4)+2*t,2)}, v{VTR if ft<2 else VTR2} offset:{(ft%2)*28672+ks*1024+t*512}")
    def gate(ft):
        vm.wait(("w", ft)); A("s_barrier")
    def stats():
        L = []
        for i in range(1, 7): L.append(f"v_pk_add_f32 {v(ST,2)}, {v(ST,2)}, {v(ST+2*i,2)}")
        L += [f"v_mov_b32 v{ST+2}, v{ST}", f"v_mov_b32 v{ST+3}, v{ST+1}", "s_nop 1",
              f"v_permlane32_swap_b32 v{ST}, v{ST+2}", f"v_permlane32_swap_b32 v{ST+1}, v{ST+3}",
              f"v_pk_add_f32 {v(ST,2)}, {v(ST,2)}, {v(ST+2,2)}",
              f"v_mul_f32 v{ST}, {fhex(1.0/D)}, v{ST}", f"v_mul_f32 v{ST+1}, {fhex(1.0/D)}, v{ST+1}",
              f"v_fma_f32 v{ST+1}, -v{ST}, v{ST}, v{ST+1}", f"v_max_f32 v{ST+1}, 0, v{ST+1}", f"v_add_f32 v{ST+1}, {fhex(1e-5)}, v{ST+1}",
              f"v_rsq_f32 v{RR}, v{ST+1}", "s_nop 0", f"v_mul_f32 v{RR+1}, v{ST}, v{RR}"]
        return L
    def cbread(ft):
        for g in range(4): ds.issue(("cb", ft), f"ds_read_b128 {v(CS+4*g,4)}, v{VCA} offset:{ft*128+g*32}")
        for g in range(4): ds.issue(("cb", ft), f"ds_read_b128 {v(B1+4*g,4)}, v{VCA} offset:{512+ft*128+g*32}")
    def store(ft):
        return [f"buffer_store_dwordx4 {v(PK+4*i,4)}, v{VL16}, {s(SWS,4)}, s{6 if ft<2 else 7} offen offset:{(ft%2)*2048+1024*i} {sc}" for i in range(2)]
    gate(0)
    rd(0); rd(1); rd(2)
    for st in range(112):
        ft, ks = divmod(st, 28)
        if ks == 0:
            if ft == 0: fill = [[] for _ in range(28)]
            else:
                G = gelu_list(ACC+16*(ft-1), CS, B1, TMP, PK, RR, CC, ONE)
                fill = [[], []] + spread(G, 25) + [[]]
        if st + 3 < 112:
            if (st + 3) % 28 == 0: gate((st + 3)//28)
            rd(st + 3)
        if ft == 0 and ks == 8: ldw(3)
        if ks == 27: cbread(ft)
        wait2(A, vm, ("h", ks) if ft == 0 else None, ds, ("w", st))
        A.mfma(ACC+16*ft, WF+4*(st%4), 4*ks, "0" if ks == 0 else None, breg=a)
        if ft == 0 and ks == 26:
            vm.wait("st")
            for x in stats(): A(x)
        if ft > 0 and ks == 2: ds.wait(("cb", ft-1))
        for x in fill[ks]: A(x)
        if ft > 0 and ks == 27:
            for x in store(ft-1): vm.issue("sto", x)
    ds.wait(("cb", 3))
    for x in gelu_list(ACC+48, CS, B1, TMP, PK+8, RR, CC, ONE): A(x)
    PK += 8
    for x in store(3): A(x)
```

```python
from base import *
NS = 14
LDS_E = 4*NS*2048
def phaseE(A, endlab, ldsc=""):
    TB, NB, SH0, SH1, SW, SL = 48, 49, 50, 51, 52, 53
    VL16, VT = 18, 20
    A.c("---- phase E: out = h + H1@w2 + b2 ----")
    A(f"s_cmp_ge_u32 s2, 224\ns_cbranch_scc1 {endlab}")
    A(f"v_lshlrev_b32 v{VL16}, 4, v0")
    A(f"s_and_b32 s4, s2, 7\ns_lshr_b32 s5, s2, 3\ns_mul_i32 s6, s5, 37\ns_lshr_b32 s6, s6, 8")
    A(f"s_mul_i32 s7, s6, 7\ns_sub_u32 s{NB}, s5, s7\ns_lshl_b32 s4, s4, 2\ns_add_u32 s{TB}, s4, s6")
    VW, VA0, VA1, VO, VB = 1, 2, 3, 4, 5
    ACC, WF, HR, BR = 32, 96, 120, 128
    vm = Trk(A, "vmcnt", 63); ds = Trk(A, "lgkmcnt", 15)
    A(f"v_lshrrev_b32 v{VT}, 3, v0\nv_mul_u32_u24 v{VT}, 896, v{VT}\nv_and_b32 v{VT+1}, 7, v0")
    A(f"v_bfe_u32 v{VT+2}, v0, 4, 1\nv_lshlrev_b32 v{VT+2}, 2, v{VT+2}\nv_xor_b32 v{VT+1}, v{VT+1}, v{VT+2}\nv_lshl_add_u32 v{VW}, v{VT+1}, 4, v{VT}")
    A(f"s_lshr_b32 s4, s3, 1\ns_lshl_b32 s5, s{TB}, 1\ns_add_u32 s54, s5, s4\ns_xor_b32 s55, s54, 1")
    A(f"s_mul_i32 s6, s3, {28*1024}\ns_add_u32 s6, s6, {H1}")
    A(f"s_mul_i32 s{SH0}, s54, {112*1024}\ns_add_u32 s{SH0}, s{SH0}, s6\ns_mul_i32 s{SH1}, s55, {112*1024}\ns_add_u32 s{SH1}, s{SH1}, s6")
    A(f"s_mul_i32 s{SW}, s3, {448*896}\ns_lshl_b32 s6, s{NB}, 7\ns_add_u32 s{SW}, s{SW}, s6")
    A(f"s_mul_i32 s{SL}, s3, {NS*2048}")
    A(f"s_and_b32 s56, s3, 1\ns_lshl_b32 s57, s{NB}, 1\ns_add_u32 s57, s57, s56")
    A(f"s_mul_i32 s4, s54, 28\ns_lshl_b32 s5, s57, 1\ns_add_u32 s4, s4, s5\ns_lshl_b32 s4, s4, 10\ns_add_u32 s4, s4, {HF}")
    A(f"s_lshl_b32 s5, s57, 6")
    A(f"v_lshrrev_b32 v{VT+3}, 5, v0\nv_lshlrev_b32 v{VB}, 3, v{VT+3}")
    A("s_waitcnt lgkmcnt(0)")
    def ld(ks):
        for q in range(2):
            A(f"s_add_u32 m0, s{SL}, {(ks%NS)*2048+q*1024}")
            A(f"s_add_u32 s6, s{SW}, {(16*ks+8*q)*896}")
            vm.issue(("w", ks), f"buffer_load_dwordx4 v{VW}, {s(SW2,4)}, s6 offen lds")
        if ks and ks % 4 == 0: A(f"s_add_u32 s{SH0}, s{SH0}, 4096\ns_add_u32 s{SH1}, s{SH1}, 4096")
        for j in range(2):
            vm.issue(("h", ks), f"buffer_load_dwordx4 {a(8*(ks%NS)+4*j,4)}, v{VL16}, {s(SWS,4)}, s{SH0+j} offen offset:{1024*(ks%4)} {ldsc}")
    ld(0)
    for i in range(2): vm.issue("r", f"buffer_load_dwordx4 {v(HR+4*i,4)}, v{VL16}, {s(SWS,4)}, s4 offen offset:{1024*i} {ldsc}")
    for g in range(4): vm.issue("r", f"buffer_load_dwordx2 {v(BR+2*g,2)}, v{VB}, {s(SB2,4)}, s5 offen offset:{16*g}")
    for ks in range(1, NS-1): ld(ks)
    A(f"v_bfe_u32 v{VT}, v0, 2, 2\nv_lshl_add_u32 v{VT}, v{VT+3}, 2, v{VT}\nv_lshlrev_b32 v{VT}, 7, v{VT}")
    A(f"v_bfe_u32 v{VT+1}, v0, 3, 1\nv_xor_b32 v{VT+1}, s56, v{VT+1}\nv_lshl_add_u32 v{VT}, v{VT+1}, 6, v{VT}")
    A(f"v_bfe_u32 v{VT+1}, v0, 4, 1\nv_lshl_add_u32 v{VT}, v{VT+1}, 5, v{VT}\nv_and_b32 v{VT+1}, 3, v0\nv_lshl_add_u32 v{VT}, v{VT+1}, 3, v{VT}")
    A(f"v_add_u32 v{VA0}, s{SL}, v{VT}\nv_xor_b32 v{VA1}, 64, v{VA0}")
    A(f"v_and_b32 v{VT}, 31, v0\nv_mul_u32_u24 v{VT}, 896, v{VT}\nv_lshl_add_u32 v{VO}, v{VT+3}, 4, v{VT}")
    vm.wait("r")
    for p in range(8):
        A(f"v_lshlrev_b32 v{ACC+2*p}, 16, v{HR+p}\nv_and_b32 v{ACC+2*p+1}, 0xffff0000, v{HR+p}")
        A(f"v_lshlrev_b32 v{VT+4}, 16, v{BR+p}\nv_and_b32 v{VT+5}, 0xffff0000, v{BR+p}")
        A(f"v_pk_add_f32 {v(ACC+2*p,2)}, {v(ACC+2*p,2)}, {v(VT+4,2)}")
    def rd(ks):
        vm.wait(("w", ks))
        for jn in range(2):
            for t in range(2):
                ds.issue(("w", ks), f"ds_read_b64_tr_b16 {v(WF+8*(ks%3)+4*jn+2*t,2)}, v{VA0+jn} offset:{(ks%NS)*2048+t*1024}")
    rd(0); rd(1)
    for ks in range(28):
        if ks + 2 < 28: rd(ks + 2)
        wait2(A, vm, ("h", ks), ds, ("w", ks))
        for j in range(4):
            jn, jt = j & 1, j >> 1
            A.mfma(ACC+16*j, WF+8*(ks%3)+4*jn, 8*(ks%NS)+4*jt, "0" if (ks == 0 and j) else None, breg=a)
            if j == 0 and ks + NS - 1 < 28: ld(ks + NS - 1)
    A(f"v_add_u32 v{VT}, s{SL}, v{VL16}")
    for j in range(1, 4):
        A(f"s_xor_b32 s4, s3, {j}\ns_mul_i32 s4, s4, {NS*2048}\ns_add_u32 s4, s4, {(j-1)*4096}\nv_add_u32 v{VT+j}, s4, v{VL16}")
    for j in range(1, 4):
        for g in range(4): A(f"ds_write_b128 v{VT}, {v(ACC+16*j+4*g,4)} offset:{(j-1)*4096+1024*g}")
    A("s_waitcnt lgkmcnt(0)\ns_barrier")
    T = 96
    for j in range(1, 4):
        for g in range(4): A(f"ds_read_b128 {v(T+16*(j-1)+4*g,4)}, v{VT+j} offset:{1024*g}")
    A(f"s_mul_i32 s4, s54, {32*896}\ns_lshl_b32 s5, s57, 6\ns_add_u32 s4, s4, s5")
    for j in range(3):
        A(f"s_waitcnt lgkmcnt({8-4*j})")
        for p in range(8): A(f"v_pk_add_f32 {v(ACC+2*p,2)}, {v(ACC+2*p,2)}, {v(T+16*j+2*p,2)}")
    for p in range(8): A(f"v_cvt_pk_bf16_f32 v{T+p}, v{ACC+2*p}, v{ACC+2*p+1}")
    for gp in range(2):
        A(f"v_permlane32_swap_b32 v{T+4*gp}, v{T+4*gp+2}\nv_permlane32_swap_b32 v{T+4*gp+1}, v{T+4*gp+3}")
    for gp in range(2):
        A(f"buffer_store_dwordx4 {v(T+4*gp,4)}, v{VO}, {s(SOUT,4)}, s4 offen offset:{32*gp}")
```

```python
import sys
from base import *
import hazard
from phA import *
def prologue(A, nwg, srds, endlab):
    A(f"s_cmp_ge_u32 s2, {nwg}\ns_cbranch_scc1 {endlab}")
    A.srds(srds)
    A("v_lshrrev_b32 v1, 6, v0\nv_and_b32 v0, 63, v0\nv_readfirstlane_b32 s3, v1")
def kA():
    A = Asm(); prologue(A, 256, [SX, SWQKV, SWS], "kA_end")
    m = phaseA(A); phaseA_nrm_store(A, m)
    A.lab("kA_end")
    return kernel_wrap("kA_kernel", hazard.fix(A.text()), 208), f"; @launch kernel=kA_kernel grid=(256,1,1) block=(256,1,1) lds={LDS_A}"
ks = [kA()]
try:
    from phB import *
    def kB():
        A = Asm(); prologue(A, 256, [SWS], "kB_end")
        phaseB(A)
        A.lab("kB_end")
        return kernel_wrap("kB_kernel", hazard.fix(A.text()), 256), f"; @launch kernel=kB_kernel grid=(256,1,1) block=(256,1,1) lds={LDS_B}"
    ks.append(kB())
    from phC import *
    def kC():
        A = Asm(); prologue(A, 252, [SWS, SWO, SX, SW1, SB1], "kC_end")
        phaseC(A, "kC_end")
        A.lab("kC_end")
        return kernel_wrap("kC_kernel", hazard.fix(A.text()), 256), f"; @launch kernel=kC_kernel grid=(252,1,1) block=(256,1,1) lds={LDS_C}"
    ks.append(kC())
    from phD import *
    def kD():
        A = Asm(); prologue(A, 256, [SWS, SW1], "kD_end")
        phaseD(A, "kD_end")
        A.lab("kD_end")
        return kernel_wrap("kD_kernel", hazard.fix(A.text()), 256, 128), f"; @launch kernel=kD_kernel grid=(256,1,1) block=(256,1,1) lds={LDS_D}"
    ks.append(kD())
    from phE import *
    def kE():
        A = Asm(); prologue(A, 256, [SWS, SW2, SB2, SOUT], "kE_end")
        phaseE(A, "kE_end")
        A.lab("kE_end")
        return kernel_wrap("kE_kernel", hazard.fix(A.text()), 256, 128), f"; @launch kernel=kE_kernel grid=(256,1,1) block=(256,1,1) lds={LDS_E}"
    ks.append(kE())
except ImportError as e:
    print("partial:", e)
out = sys.argv[1] if len(sys.argv) > 1 else "v1.s"
open(out, "w").write("\n".join(k[1] for k in ks) + '\n.amdgcn_target "amdgcn-amd-amdhsa--gfx950"\n' + "\n".join(k[0] for k in ks))
```

```python
import math
NAME = "sequential_preLN__softmax_full_mha__dense_activation_gelu__prompt"
S, D, H, DH, F = 2048, 448, 16, 28, 1792
MB = 1 << 20
QF  = 0
KV  = 2*MB
NRM = 6*MB
OF  = 7*MB
HF  = 9*MB
H1  = 11*MB
CS1 = 18*MB
ST2 = 19*MB
WS_BYTES = 268435456
TR = 24*MB
TRACE=[False]
STAMPS={}

def v(b, n=1): return f"v{b}" if n == 1 else f"v[{b}:{b+n-1}]"
def a(b, n=1): return f"a{b}" if n == 1 else f"a[{b}:{b+n-1}]"
def s(b, n=1): return f"s{b}" if n == 1 else f"s[{b}:{b+n-1}]"
import struct
def fhex(x): return "0x%08x" % struct.unpack("<I", struct.pack("<f", x))[0]

SX, SWQKV, SWO, SW1, SW2, SWS, SOUT, SB1, SB2, SDBG = 8, 12, 16, 20, 24, 28, 32, 36, 40, 44
KARG = {SX: (0, S*D*2), SWQKV: (8, D*3*D*2), SWO: (16, D*D*2), SW1: (32, D*F*2), SB1: (40, F*2),
        SW2: (48, F*D*2), SB2: (56, D*2), SOUT: (64, S*D*2), SDBG: (72, 256), SWS: (80, WS_BYTES)}

class Asm:
    def __init__(self):
        self.L = []
        self.nlab = 0
        self.stamps = []
    def __call__(self, t):
        for x in t.split("\n"):
            self.L.append("  " + x.strip())
    def lab(self, name): self.L.append(name + ":")
    def newlab(self, p="L"):
        self.nlab += 1
        return f"{p}_{self.nlab}"
    def c(self, t): self.L.append("  ; " + t)
    def srds(self, lst):
        for r in lst:
            self(f"s_load_dwordx2 {s(r,2)}, s[0:1], {KARG[r][0]}")
        for r in lst:
            self(f"s_mov_b32 {s(r+2)}, {KARG[r][1]}")
            self(f"s_mov_b32 {s(r+3)}, 0x20000")
    def mfma(self, d, A, B, C=None, dreg=v, areg=v, breg=v):
        cs = dreg(d, 16) if C is None else C
        self(f"v_mfma_f32_32x32x16_bf16 {dreg(d,16)}, {areg(A,4)}, {breg(B,4)}, {cs}")
    def stamp(self, name):
        if not TRACE[0]: return
        k = len(self.stamps); self.stamps.append(name)
        assert k < 14
        self(f"s_memtime s[{64+2*k}:{65+2*k}]")
    def stamp_begin(self):
        self.stamps = []
        if TRACE[0]: self("s_memrealtime s[92:93]")
        self.stamp("start")
    def stamp_end(self, kidx, wgreg="s2"):
        if not TRACE[0]: return
        self.stamp("end")
        self("s_memrealtime s[94:95]")
        self(f"s_lshl_b32 s4, {wgreg}, 2\ns_add_u32 s4, s4, s3\ns_add_u32 s4, s4, {kidx*1024}\ns_lshl_b32 s4, s4, 6\ns_add_u32 s4, s4, {TR}")
        self("s_waitcnt lgkmcnt(0)")
        self("s_mov_b64 exec, 1\nv_mov_b32 v2, 0")
        for k in range(len(self.stamps)):
            self(f"v_mov_b32 v1, s{64+2*k}\nbuffer_store_dword v1, v2, {s(SWS,4)}, s4 offen offset:{4*k}")
        self(f"v_mov_b32 v1, s92\nbuffer_store_dword v1, v2, {s(SWS,4)}, s4 offen offset:56")
        self(f"v_mov_b32 v1, s94\nbuffer_store_dword v1, v2, {s(SWS,4)}, s4 offen offset:60")
        STAMPS[kidx] = list(self.stamps)
    def text(self): return "\n".join(self.L)

def kernel_wrap(name, body, nvgpr, nagpr=0, nsgpr=96):
    acc = (nvgpr + 3) // 4 * 4
    tot = acc + nagpr
    return f""".text
.globl {name}
.p2align 8
.type {name},@function
{name}:
{body}
  s_endpgm
.section .rodata,"a"
.p2align 6
.amdhsa_kernel {name}
  .amdhsa_next_free_vgpr {tot}
  .amdhsa_next_free_sgpr {nsgpr}
  .amdhsa_accum_offset {acc}
  .amdhsa_group_segment_fixed_size 0
  .amdhsa_kernarg_size 88
  .amdhsa_user_sgpr_count 2
  .amdhsa_user_sgpr_kernarg_segment_ptr 1
  .amdhsa_system_sgpr_workgroup_id_x 1
.end_amdhsa_kernel
"""

class Trk:
    def __init__(self, A, name, cap):
        self.A = A; self.name = name; self.cap = cap; self.q = []; self.done = 0
    def issue(self, tag, text):
        self.A(text); self.q.append(tag)
    def count(self, tag):
        idx = max((i for i, t in enumerate(self.q) if t == tag), default=None)
        if idx is None or idx < self.done: return None
        return len(self.q) - 1 - idx
    def wait(self, tag):
        n = self.count(tag)
        if n is None: return
        n = min(n, self.cap)
        self.A(f"s_waitcnt {self.name}({n})")
        self.done = len(self.q) - n
    def waitstr(self, tag):
        n = self.count(tag)
        if n is None: return ""
        n = min(n, self.cap); self.done = len(self.q) - n
        return f"{self.name}({n})"
def wait2(A, vm, vt, ds, dt):
    p = [x for x in ((vm.waitstr(vt) if vt is not None else ""), (ds.waitstr(dt) if dt is not None else "")) if x]
    if p: A("s_waitcnt " + " ".join(p))
def spread(items, n):
    out = []; L = len(items)
    for i in range(n): out.append(items[(i*L)//n:((i+1)*L)//n])
    return out
```

```python
import math, struct
NAME = "sequential_preLN__softmax_full_mha__dense_activation_gelu__prompt"
S, D, H, DH, F = 2048, 448, 16, 28, 1792
MB = 1 << 20
EP  = 0
FA  = 0x20000
FB  = 0x40000
FC  = 0x60000
FD  = 0x80000
ST2 = 0xA0000
KV  = 1*MB
OF  = 5*MB
HF  = 7*MB
H1  = 9*MB
QF  = 16*MB
WS_BYTES = 268435456
TR = 24*MB
TRACE = [False]
STAMPS = {}
TAGINC = 0x9E3779B0

def v(b, n=1): return f"v{b}" if n == 1 else f"v[{b}:{b+n-1}]"
def a(b, n=1): return f"a{b}" if n == 1 else f"a[{b}:{b+n-1}]"
def s(b, n=1): return f"s{b}" if n == 1 else f"s[{b}:{b+n-1}]"
def fhex(x): return "0x%08x" % struct.unpack("<I", struct.pack("<f", x))[0]

SX, SWQKV, SWO, SW1, SW2, SWS, SOUT, SB1, SB2 = 8, 12, 16, 20, 24, 28, 32, 36, 40
KARG = {SX: (0, S*D*2), SWQKV: (8, D*3*D*2), SWO: (16, D*D*2), SW1: (32, D*F*2), SB1: (40, F*2),
        SW2: (48, F*D*2), SB2: (56, D*2), SOUT: (64, S*D*2), SWS: (80, WS_BYTES)}
NSTAMP = 18

class Asm:
    def __init__(self):
        self.L = []
        self.nlab = 0
        self.stamps = []
    def __call__(self, t):
        for x in t.split("\n"):
            if x.strip(): self.L.append("  " + x.strip())
    def lab(self, name): self.L.append(name + ":")
    def newlab(self, p="L"):
        self.nlab += 1
        return f"{p}_{self.nlab}"
    def c(self, t): self.L.append("  ; " + t)
    def mfma(self, d, A, B, C=None, dreg=v, areg=v, breg=v):
        cs = dreg(d, 16) if C is None else C
        self(f"v_mfma_f32_32x32x16_bf16 {dreg(d,16)}, {areg(A,4)}, {breg(B,4)}, {cs}")
    def stamp(self, name):
        if not TRACE[0]: return
        k = len(self.stamps); self.stamps.append(name)
        assert k < NSTAMP, name
        self(f"s_memtime s[{64+2*k}:{65+2*k}]")
    def stamp_begin(self):
        self.stamps = []
        if TRACE[0]: self("s_memrealtime s[100:101]")
        self.stamp("start")
    def stamp_end(self):
        if not TRACE[0]: return
        self.stamp("end")
        self("s_memrealtime s[6:7]")
        self(f"s_lshl_b32 s4, s2, 2\ns_add_u32 s4, s4, s3\ns_lshl_b32 s4, s4, 7\ns_add_u32 s4, s4, {TR}")
        self("s_waitcnt lgkmcnt(0)")
        self("s_mov_b64 exec, 1\nv_mov_b32 v2, 0")
        for k in range(len(self.stamps)):
            self(f"v_mov_b32 v1, s{64+2*k}\nbuffer_store_dword v1, v2, {s(SWS,4)}, s4 offen offset:{4*k}")
        self(f"v_mov_b32 v1, s100\nbuffer_store_dword v1, v2, {s(SWS,4)}, s4 offen offset:120")
        self(f"v_mov_b32 v1, s6\nbuffer_store_dword v1, v2, {s(SWS,4)}, s4 offen offset:124")
        self(f"s_getreg_b32 s6, hwreg(HW_REG_XCC_ID)\nv_mov_b32 v1, s6\nbuffer_store_dword v1, v2, {s(SWS,4)}, s4 offen offset:116")
        STAMPS[0] = list(self.stamps)
    def text(self): return "\n".join(self.L)

def kernel_wrap(name, body, nvgpr, nagpr=0, nsgpr=102):
    acc = (nvgpr + 3) // 4 * 4
    tot = acc + nagpr
    return f""".text
.globl {name}
.p2align 8
.type {name},@function
{name}:
{body}
.section .rodata,"a"
.p2align 6
.amdhsa_kernel {name}
  .amdhsa_next_free_vgpr {tot}
  .amdhsa_next_free_sgpr {nsgpr}
  .amdhsa_accum_offset {acc}
  .amdhsa_group_segment_fixed_size 0
  .amdhsa_kernarg_size 88
  .amdhsa_user_sgpr_count 2
  .amdhsa_user_sgpr_kernarg_segment_ptr 1
  .amdhsa_system_sgpr_workgroup_id_x 1
.end_amdhsa_kernel
"""

class Trk:
    def __init__(self, A, name, cap):
        self.A = A; self.name = name; self.cap = cap; self.q = []; self.done = 0
    def issue(self, tag, text):
        self.A(text); self.q.append(tag)
    def count(self, tag):
        idx = max((i for i, t in enumerate(self.q) if t == tag), default=None)
        assert idx is not None, ("never issued", tag)
        if idx < self.done: return None
        return len(self.q) - 1 - idx
    def waitstr(self, tag):
        n = self.count(tag)
        if n is None: return ""
        n = min(n, self.cap); self.done = max(self.done, len(self.q) - n)
        return f"{self.name}({n})"
    def wait(self, tag):
        w = self.waitstr(tag)
        if w: self.A("s_waitcnt " + w)
    def all(self):
        if self.done < len(self.q):
            self.A(f"s_waitcnt {self.name}(0)"); self.done = len(self.q)
    def known_done(self): self.done = len(self.q)
def wait2(A, vm, vt, ds, dt):
    p = [x for x in ((vm.waitstr(vt) if vt is not None else ""), (ds.waitstr(dt) if dt is not None else "")) if x]
    if p: A("s_waitcnt " + " ".join(p))
def spread(items, n):
    out = []; L = len(items)
    for i in range(n): out.append(items[(i*L)//n:((i+1)*L)//n])
    return out
```

```python
from base import *
QSCALE = (DH ** -0.5) * math.log2(math.e)
TAG, HH, RB, TG, KVO, TB, NB, FBK, TGD, SOWO, SOW1, SOW2, INCA, INCB, SRED, SPIN = range(48, 64)
GX, SOX, SOW, SLX = 44, 45, 46, 47
LXW = 28672
RED = 114688
LMISC = 155648
LDS_TOTAL = 163840
LQX = 24576
LQN = 3*LXW + LQX + 2048
LFB = 20480
VL16, VKV = 1, 2
VPA, VPD = 15, 16
VT = 18
BOUND = 30000

class Ctx: pass

def poll_issue(K, x2=False):
    K.vm.issue("poll", f"buffer_load_dword{'x2' if x2 else ''} {v(VPD, 2 if x2 else 1)}, v{VPA}, {s(SWS,4)}, 0 offen sc1")
def poll_check(K, need, x2=False, t=VT, top=None):
    A = K.A
    ok = A.newlab("ok"); sp = A.newlab("spin")
    rng = 0 if top is None else top - need
    A(f"s_add_u32 s4, s{TAG}, {need}")
    K.vm.wait("poll")
    A(f"v_subrev_u32 v{t}, s4, v{VPD}\nv_cmp_lt_u32 vcc, {rng}, v{t}\ns_cbranch_vccz {ok}")
    A(f"s_mov_b32 s{SPIN}, {BOUND}")
    A.lab(sp)
    A(f"buffer_load_dword{'x2' if x2 else ''} {v(VPD, 2 if x2 else 1)}, v{VPA}, {s(SWS,4)}, 0 offen sc1")
    A("s_waitcnt vmcnt(0)")
    A(f"v_subrev_u32 v{t}, s4, v{VPD}\nv_cmp_lt_u32 vcc, {rng}, v{t}\ns_cbranch_vccz {ok}")
    A(f"s_sub_u32 s{SPIN}, s{SPIN}, 1\ns_cbranch_scc0 {sp}")
    A.lab(ok)
def flag_store(K, soff, stage, t=VT, payload=None):
    A = K.A
    A(f"s_add_u32 s5, s{TAG}, {stage}\nv_mov_b32 v{t}, s5")
    if payload is not None: A(f"v_mov_b32 v{t+1}, s{payload}")
    A("s_mov_b64 exec, 1")
    K.vm.issue("flag", f"buffer_store_dword{'x2' if payload is not None else ''} {v(t, 2 if payload is not None else 1)}, off, {s(SWS,4)}, s{soff} sc1")
    A("s_mov_b64 exec, -1")

def prologue(K):
    A = K.A
    A("s_cmp_ge_u32 s2, 256\ns_cbranch_scc1 L_exit")
    A.stamp_begin()
    for r in (SX, SWQKV, SWS, SWO, SW1, SW2, SB1, SB2, SOUT):
        A(f"s_load_dwordx2 {s(r,2)}, s[0:1], {KARG[r][0]}")
    A("v_lshrrev_b32 v1, 6, v0\nv_and_b32 v0, 63, v0\nv_readfirstlane_b32 s3, v1")
    for r in (SX, SWQKV, SWS):
        A(f"s_mov_b32 {s(r+2)}, {KARG[r][1]}\ns_mov_b32 {s(r+3)}, 0x20000")

def phaseA(K, dbgq=False):
    A, vm, ds = K.A, K.vm, K.ds
    A.c("---- phase A: LN1 + QKV ----")
    VX = 3
    VWK, VWV, VWQ = 7, 8, 9
    XA = 10
    VTA, VTB, VTC = 14, 26, 27
    ONE, SXs, SXX, CSK, CSV, CSQ = 28, 29, 30, 31, 25, 24
    WF, ACK, ACV, SR, PK, XF = 32, 64, 80, 96, 112, 128
    XE, WEK, WEV = 240, 244, 248
    A(f"s_and_b32 s4, s2, 7\ns_lshr_b32 s5, s2, 3\ns_and_b32 s6, s5, 1\ns_lshl_b32 s7, s4, 1\ns_add_u32 s{HH}, s7, s6\ns_lshr_b32 s{RB}, s5, 1")
    A(f"s_lshl_b32 s{TG}, s{RB}, 2\ns_add_u32 s{TG}, s{TG}, s3")
    A(f"v_lshlrev_b32 v{VL16}, 4, v0")
    A(f"v_lshrrev_b32 v{VT}, 3, v0\nv_and_b32 v{VT+1}, 7, v0\nv_lshrrev_b32 v{VT+2}, 4, v0\nv_xor_b32 v{VT+1}, v{VT+1}, v{VT+2}")
    A(f"v_mul_u32_u24 v{VT}, 896, v{VT}\nv_lshl_add_u32 v{VX}, v{VT+1}, 4, v{VT}")
    A(f"v_xor_b32 v{VX+1}, 64, v{VX}\nv_add_u32 v{VX+2}, {2*6144}, v{VX}\nv_add_u32 v{VX+3}, {3*6144}, v{VX+1}\nv_add_u32 v{VX+1}, 6144, v{VX+1}")
    A(f"v_lshrrev_b32 v{VT}, 2, v0\nv_mul_u32_u24 v{VT}, 2688, v{VT}\nv_and_b32 v{VT+1}, 3, v0\nv_lshl_add_u32 v{VT}, v{VT+1}, 4, v{VT}")
    A(f"s_mul_i32 s4, s{HH}, 56\ns_and_b32 s4, s4, 0xfffffff0")
    A(f"v_add_u32 v{VWQ}, s4, v{VT}\nv_add_u32 v{VWK}, 896, v{VWQ}\nv_add_u32 v{VWV}, {1792-1024}, v{VWQ}")
    A(f"s_mul_i32 s{SOX}, s{TG}, {32*896}\ns_mul_i32 s{SOW}, s3, {16*2688}\ns_mul_i32 s{SLX}, s3, {LXW}")
    A(f"s_cmp_ge_u32 s{RB}, 7\ns_cselect_b32 s4, 7, 0\ns_cmp_ge_u32 s{RB}, 14\ns_cselect_b32 s4, 14, s4\ns_sub_u32 s4, s{RB}, s4\ns_lshl_b32 s{GX}, s4, 7")
    A(f"s_mov_b32 s{KVO}, s{GX}")
    A(f"s_lshl_b32 s{SRED}, s3, 11\ns_add_u32 s{SRED}, s{SRED}, {RED}")
    def adv(r): A(f"s_add_u32 s{r}, s{r}, 128\ns_cmp_eq_u32 s{r}, 896\ns_cselect_b32 s{r}, 0, s{r}")
    def ldpos(i):
        A(f"s_add_u32 m0, s{SLX}, {i*4096}\ns_add_u32 s6, s{SOX}, s{GX}\ns_mul_i32 s7, s{GX}, 1344")
        for q in range(4): vm.issue(("p", i), f"buffer_load_dwordx4 v{VX+q}, {s(SX,4)}, s6 offen offset:{1024*q} lds")
        if i < 5: A(f"s_add_u32 m0, s{SRED}, {i*8192}")
        else: A(f"s_add_u32 m0, s{SLX}, {(i-5)*2048}")
        A(f"s_add_u32 s7, s7, s{SOW}")
        vm.issue(("p", i), f"buffer_load_dwordx4 v{VWK}, {s(SWQKV,4)}, s7 offen lds")
        vm.issue(("p", i), f"buffer_load_dwordx4 v{VWV}, {s(SWQKV,4)}, s7 offen offset:1024 lds")
        adv(GX)
    def ldq(i):
        A(f"s_add_u32 m0, s{SLX}, {4096 + i*1024}\ns_mul_i32 s7, s{KVO}, 1344\ns_add_u32 s7, s7, s{SOW}")
        vm.issue("wq", f"buffer_load_dwordx4 v{VWQ}, {s(SWQKV,4)}, s7 offen lds")
        adv(KVO)
    A("s_waitcnt lgkmcnt(0)")
    A.stamp("karg")
    ldpos(0)
    A(f"s_load_dword s{TAG}, {s(SWS,2)}, {EP}")
    ldpos(1)
    A("s_getpc_b64 s[6:7]")
    A.lab("L_pc")
    A(f"s_lshr_b32 s4, s2, 3\ns_lshl_b32 s4, s4, 2\ns_add_u32 s4, s4, s3\ns_mul_i32 s4, s4, ((L_end-L_pc)/16384+1)*128")
    A(f"v_lshlrev_b32 v{VT}, 7, v0\nv_min_u32 v{VT}, ((L_end-L_pc)/16384)*128, v{VT}\nv_add_u32 v{VT}, s4, v{VT}\nv_min_u32 v{VT}, L_end-L_pc-4, v{VT}")
    vm.issue("pf", f"global_load_dword v{VPD}, v{VT}, s[6:7]")
    ldpos(2)
    A(f"s_cmp_lt_u32 s2, 224")
    for r in (SWO, SW1, SW2, SB1, SB2, SOUT):
        A(f"s_cselect_b32 {s(r+2)}, {KARG[r][1]}, 0\ns_mov_b32 {s(r+3)}, 0x20000")
    A(f"v_and_b32 v{VT}, 31, v0\nv_lshrrev_b32 v{VT+1}, 5, v0\nv_bfe_u32 v{VT+2}, v0, 1, 3\nv_xor_b32 v{VT+2}, v{VT+2}, v{VT+1}")
    A(f"v_lshlrev_b32 v{VT+3}, 7, v{VT}\nv_add_u32 v{VT+3}, s{SLX}, v{VT+3}")
    for sp in range(4): A(f"v_xor_b32 v{VT+4}, {2*sp}, v{VT+2}\nv_lshl_add_u32 v{XA+sp}, v{VT+4}, 4, v{VT+3}")
    A(f"v_bfe_u32 v{VT+4}, v0, 2, 2\nv_lshl_add_u32 v{VT+4}, v{VT+1}, 3, v{VT+4}\nv_lshlrev_b32 v{VT+4}, 6, v{VT+4}")
    A(f"v_bfe_u32 v{VT+5}, v0, 4, 1\nv_lshl_add_u32 v{VT+4}, v{VT+5}, 5, v{VT+4}\nv_and_b32 v{VT+5}, 3, v0\nv_lshl_add_u32 v{VT+4}, v{VT+5}, 3, v{VT+4}")
    A(f"s_and_b32 s4, s{HH}, 1\ns_lshl_b32 s4, s4, 3")
    A(f"v_add_u32 v{VTB}, s4, v{VT+4}\nv_add_u32 v{VTA}, {RED}, v{VTB}\nv_add_u32 v{VTC}, {2*LXW}, v{VTB}")
    A(f"v_mov_b32 v{ONE}, 0x3f803f80")
    for r in (SXs, SXX, CSK, CSV, CSQ, XE+2, XE+3, WEK+2, WEK+3, WEV+2, WEV+3): A(f"v_mov_b32 v{r}, 0")
    A(f"s_lshl_b32 s4, s{HH}, 13\ns_add_u32 s4, s4, {FA}\nv_lshlrev_b32 v{VPA}, 7, v0\nv_add_u32 v{VPA}, s4, v{VPA}")
    A(f"s_lshl_b32 s4, s{HH}, 18\ns_lshl_b32 s5, s3, 12\ns_add_u32 s4, s4, s5\ns_add_u32 s4, s4, {KV}\nv_add_u32 v{VKV}, s4, v{VL16}")
    def reads(n):
        i, sp = divmod(n, 4); b = n % 4
        ds.issue(("r", n), f"ds_read_b128 {v(XF+4*n,4)}, v{XA+sp} offset:{i*4096}")
        for sec in range(2):
            for t in range(2):
                if i < 5: ad, of = VTA, n*2048
                else: ad, of = (VTB if sp < 2 else VTC), (sp & 1)*LXW + (i-5)*2048
                ds.issue(("r", n), f"ds_read_b64_tr_b16 {v(WF+8*b+4*sec+2*t,2)}, v{ad} offset:{of + sec*1024 + t*256}")
    def gate(i):
        vm.wait(("p", i)); A("s_barrier")
        if i in (0, 3, 6): A.stamp(f"gate{i}")
        if i + 3 < 7: ldpos(i + 3)
        if i == 4:
            for q in range(4): ldq(q)
        if i == 5:
            for q in range(4, 7): ldq(q)
    def dots(n):
        b = n % 4
        ds.wait(("r", n))
        for j in range(4):
            A(f"v_dot2c_f32_bf16 v{SXX}, v{XF+4*n+j}, v{XF+4*n+j}\nv_dot2c_f32_bf16 v{SXs}, v{XF+4*n+j}, v{ONE}")
            A(f"v_dot2c_f32_bf16 v{CSK}, v{WF+8*b+j}, v{ONE}\nv_dot2c_f32_bf16 v{CSV}, v{WF+8*b+4+j}, v{ONE}")
    def mk(n): A.mfma(ACK, WF+8*(n%4), XF+4*n, "0" if n == 0 else None)
    def mv(n): A.mfma(ACV, XF+4*n, WF+8*(n%4)+4, "0" if n == 0 else None)
    A.stamp("issued")
    gate(0); reads(0); reads(1)
    for n in range(24):
        dots(n); mk(n); mv(n)
        if n + 2 < 24:
            if (n + 2) % 4 == 0: gate((n + 2)//4)
            reads(n + 2)
    gate(6)
    for n in range(24, 28): reads(n)
    for n in range(24, 28): dots(n)
    T = VT
    R_, NM = T+4, T+5
    st = [f"v_mov_b32 v{T}, v{SXs}\nv_mov_b32 v{T+1}, v{SXX}",
          f"v_cvt_pk_bf16_f32 v{WEK}, v{CSK}, v{CSK}\nv_cvt_pk_bf16_f32 v{WEV}, v{CSV}, v{CSV}",
          f"v_permlane32_swap_b32 v{SXs}, v{T}\nv_permlane32_swap_b32 v{SXX}, v{T+1}",
          f"v_and_b32 v{T+2}, 0xffff0000, v{WEK}\nv_and_b32 v{T+3}, 0xffff0000, v{WEV}",
          f"v_add_f32 v{SXs}, v{SXs}, v{T}\nv_add_f32 v{SXX}, v{SXX}, v{T+1}",
          f"v_mul_f32 v{NM}, {fhex(-1.0/D)}, v{SXs}\nv_mul_f32 v{SXX}, {fhex(1.0/D)}, v{SXX}",
          f"v_fma_f32 v{SXX}, -v{NM}, v{NM}, v{SXX}\nv_max_f32 v{SXX}, 0, v{SXX}\nv_add_f32 v{SXX}, {fhex(1e-5)}, v{SXX}",
          f"v_rsq_f32 v{R_}, v{SXX}\nv_and_b32 v{T}, 31, v0\nv_lshlrev_b32 v{T}, 2, v{T}",
          f"s_lshl_b32 s4, s3, 7\ns_add_u32 s4, s4, {LMISC}\nv_add_u32 v{T}, s4, v{T}\nv_lshrrev_b32 v{T+1}, 5, v0\nv_lshl_add_u32 v{T+1}, v{T+1}, 4, s4",
          "W",
          f"v_sub_f32 v{T+2}, v{CSK}, v{T+2}\nv_sub_f32 v{T+3}, v{CSV}, v{T+3}\nv_cvt_pk_bf16_f32 v{XE}, v{NM}, v{NM}",
          "R",
          f"v_cvt_pk_bf16_f32 v{WEK+1}, v{T+2}, v{T+2}\nv_cvt_pk_bf16_f32 v{WEV+1}, v{T+3}, v{T+3}\nv_and_b32 v{T+2}, 0xffff0000, v{XE}",
          f"v_sub_f32 v{T+2}, v{NM}, v{T+2}\nv_cvt_pk_bf16_f32 v{XE}, v{NM}, v{T+2}\nv_mov_b32 v{XE+1}, v{XE}"]
    ch = spread(st, 7)
    def emit(x):
        if x == "W": ds.issue("sr", f"ds_write_b32 v{T}, v{R_}")
        elif x == "R":
            ds.wait("sr")
            for g in range(4): ds.issue("sr2", f"ds_read_b128 {v(SR+4*g,4)}, v{T+1} offset:{g*32}")
        else: A(x)
    seq = [(mk, 24), (mv, 24), (mk, 25), (mv, 25), (mk, 26), (mv, 26), (mk, 27), (mv, 27)]
    for i, (f, n) in enumerate(seq):
        f(n)
        if i < 7:
            for x in ch[i]: emit(x)
    A.mfma(ACK, WEK, XE); A.mfma(ACV, XE, WEV)
    A.stamp("kvloop")
    A(f"s_lshl_b32 s{KVO}, s{RB}, 14")
    def scale(acc, out, rr=None, rv=None):
        for p in range(8):
            if rr is not None: A(f"v_pk_mul_f32 {v(acc+2*p,2)}, {v(acc+2*p,2)}, {v(rr&~1,2)} op_sel:[0,{rr&1}] op_sel_hi:[1,{rr&1}]")
            else: A(f"v_pk_mul_f32 {v(acc+2*p,2)}, {v(acc+2*p,2)}, {v(rv+2*p,2)}")
        for p in range(8): A(f"v_cvt_pk_bf16_f32 v{out+p}, v{acc+2*p}, v{acc+2*p+1}")
    scale(ACK, PK, rr=R_)
    A("s_mov_b32 exec_lo, 0")
    A(f"v_mov_b32 v{PK+6}, v{ONE}\nv_mov_b32 v{PK+7}, 0x3f80")
    A("s_mov_b32 exec_lo, -1")
    for i in range(2): vm.issue("kvst", f"buffer_store_dwordx4 {v(PK+4*i,4)}, v{VKV}, {s(SWS,4)}, s{KVO} offen offset:{1024*i} sc1")
    ds.wait("sr2")
    scale(ACV, PK+8, rv=SR)
    A("s_mov_b32 exec_lo, 0xe0000000\ns_mov_b32 exec_hi, 0xe0000000")
    for p in range(8): A(f"v_mov_b32 v{PK+8+p}, 0")
    A("s_mov_b32 exec_lo, 0x10000000\ns_mov_b32 exec_hi, 0x10000000")
    for p in range(8): A(f"v_mov_b32 v{PK+8+p}, v{ONE}")
    A("s_mov_b64 exec, -1")
    for i in range(2, 4): vm.issue("kvst", f"buffer_store_dwordx4 {v(PK+4*i,4)}, v{VKV}, {s(SWS,4)}, s{KVO} offen offset:{1024*i} sc1")
    A.stamp("kvst")
    vm.wait("wq"); A("s_barrier")
    def rq(bt):
        for sp in range(4):
            for t in range(2):
                ds.issue(("q", bt), f"ds_read_b64_tr_b16 {v(WF+16*(bt%2)+4*sp+2*t,2)}, v{VTB if sp<2 else VTC} offset:{(sp&1)*LXW + 4096 + bt*1024 + t*256}")
    rq(0)
    N = T
    A(f"v_mov_b32 v{N}, 0\nv_mov_b32 v{N+1}, 0")
    for p in range(8): A(f"v_dot2c_f32_bf16 v{N}, v{PK+p}, v{PK+p}\nv_dot2c_f32_bf16 v{N+1}, v{PK+8+p}, v{PK+8+p}")
    A(f"v_mov_b32 v{N+2}, v{N}\nv_mov_b32 v{N+3}, {fhex(2.0**96)}\nv_mov_b32 v{SXs}, {fhex(float('inf'))}")
    A(f"v_permlane32_swap_b32 v{N}, v{N+2}\nv_cmp_ge_f32 vcc, v{N+3}, v{N+1}\nv_add_f32 v{N}, v{N}, v{N+2}\nv_cndmask_b32 v{N}, v{SXs}, v{N}, vcc")
    def maxred(r, dst):
        L = [f"v_max_u32_dpp v{r}, v{r}, v{r} row_ror:{x} row_mask:0xf bank_mask:0xf" for x in (8, 4, 2, 1)]
        L += [f"v_readlane_b32 s{dst}, v{r}, 0\nv_readlane_b32 s4, v{r}, 16\nv_readlane_b32 s5, v{r}, 32\nv_readlane_b32 s6, v{r}, 48",
              f"s_max_u32 s{dst}, s{dst}, s4\ns_max_u32 s5, s5, s6\ns_max_u32 s{dst}, s{dst}, s5"]
        return L
    KN = SOX
    fill = maxred(N, KN) + K.attn_setup()
    ch = spread(fill, 12)
    ci = 0
    for bt in range(7):
        ds.wait(("q", bt))
        for r in range(16): A(f"v_dot2c_f32_bf16 v{CSQ}, v{WF+16*(bt%2)+r}, v{ONE}")
        for sp in range(4):
            n = 4*bt + sp
            A.mfma(ACK, WF+16*(bt%2)+4*sp, XF+4*n, "0" if n == 0 else None)
            if sp == 0 and bt < 6: rq(bt + 1)
            elif ci < 12 and bt < 4:
                for x in ch[ci]: A(x)
                ci += 1
            if bt == 4 and sp == 1:
                A(f"s_lshl_b32 s6, s{HH}, 6\ns_add_u32 s6, s6, s{TG}\ns_lshl_b32 s6, s6, 7\ns_add_u32 s6, s6, {FA}")
                A(f"s_waitcnt lgkmcnt(0)"); ds.known_done()
                A(f"s_add_u32 s{TAG}, s{TAG}, {TAGINC}")
                vm.wait("kvst")
                flag_store(K, 6, 1, t=N, payload=KN)
                A.stamp("flagA")
            if bt == 6 and sp == 0:
                A(f"v_cvt_pk_bf16_f32 v{WEK}, v{CSQ}, v{CSQ}\nv_and_b32 v{T+2}, 0xffff0000, v{WEK}\nv_sub_f32 v{T+2}, v{CSQ}, v{T+2}\nv_cvt_pk_bf16_f32 v{WEK+1}, v{T+2}, v{T+2}")
                A(f"v_mul_f32 v{R_}, {fhex(QSCALE)}, v{R_}")
    A.mfma(ACK, WEK, XE)
    poll_issue(K, x2=True)
    Q = 32
    A(f"s_add_u32 s4, s{SLX}, {LQX}\nv_add_u32 v{T}, s4, v{VL16}")
    for p in range(3):
        A(f"s_add_u32 s4, s3, {1+p}\ns_and_b32 s4, s4, 3\ns_mul_i32 s4, s4, {LXW}\ns_add_u32 s4, s4, {LQX}\nv_add_u32 v{T+1+p}, s4, v{VL16}")
    scale(ACK, Q+24, rr=R_)
    A("s_mov_b32 exec_lo, 0")
    A(f"v_mov_b32 v{Q+30}, 0\nv_mov_b32 v{Q+31}, 0")
    A("s_mov_b32 exec_lo, -1")
    for i in range(2): ds.issue("qw", f"ds_write_b128 v{T}, {v(Q+24+4*i,4)} offset:{1024*i}")
    if dbgq:
        A(f"s_lshl_b32 s4, s{HH}, 6\ns_add_u32 s4, s4, s{TG}\ns_lshl_b32 s4, s4, 11\ns_add_u32 s4, s4, {QF}")
        for i in range(2): vm.issue("dbg", f"buffer_store_dwordx4 {v(Q+24+4*i,4)}, v{VL16}, {s(SWS,4)}, s4 offen offset:{1024*i}")
    QN = T+5
    A(f"v_mov_b32 v{QN}, 0")
    for p in range(8): A(f"v_dot2c_f32_bf16 v{QN}, v{Q+24+p}, v{Q+24+p}")
    A(f"v_mov_b32 v{T+4}, v{QN}\nv_permlane32_swap_b32 v{QN}, v{T+4}\nv_add_f32 v{QN}, v{QN}, v{T+4}")
    for x in (8, 4, 2, 1): A(f"v_max_u32_dpp v{QN}, v{QN}, v{QN} row_ror:{x} row_mask:0xf bank_mask:0xf")
    A(f"s_lshl_b32 s4, s3, 3\ns_add_u32 s4, s4, {LQN}\nv_bfe_u32 v{T+4}, v0, 4, 1\nv_lshl_add_u32 v{T+4}, v{T+4}, 2, s4")
    ds.issue("qw", f"ds_write_b32 v{T+4}, v{QN}")
    ds.all(); A("s_barrier")
    A.stamp("qx")
    A(f"v_mov_b32 v{T+4}, {LQN}")
    for g in range(2): ds.issue("qn", f"ds_read_b128 {v(64+4*g,4)}, v{T+4} offset:{16*g}")
    for p in range(3):
        for i in range(2): ds.issue(("qr", p), f"ds_read_b128 {v(Q+8*p+4*i,4)}, v{T+1+p} offset:{1024*i}")
```

```python
from mkA import *
VQ, VW1, VA0, VA1, VXR, VB2 = 3, 7, 11, 12, 13, 14
VRW = 25; VRR = 29
VB1 = 20
SXO, SCO = 44, 46
Q, SB, P, R, O = 32, 64, 96, 112, 176
XR, B2R = 240, 248
AWO = 192

def attn_setup():
    t = 23
    L = [f"s_lshr_b32 s4, s2, 3\ns_min_u32 s4, s4, 27\ns_and_b32 s5, s2, 7\ns_mul_i32 s6, s4, 37\ns_lshr_b32 s6, s6, 8\ns_mul_i32 s7, s6, 7",
         f"s_sub_u32 s{NB}, s4, s7\ns_lshl_b32 s{TB}, s5, 2\ns_add_u32 s{TB}, s{TB}, s6\ns_lshr_b32 s6, s6, 1\ns_mul_i32 s7, s6, 14\ns_sub_u32 s{FBK}, s4, s7",
         f"s_lshl_b32 s5, s5, 1\ns_add_u32 s5, s5, s6\ns_lshl_b32 s{TGD}, s5, 2\ns_add_u32 s{TGD}, s{TGD}, s3\ns_mul_i32 s{SRED}, s3, 12288\ns_add_u32 s{SRED}, s{SRED}, {RED}",
         f"s_mul_i32 s{SOWO}, s3, {112*896}\ns_lshl_b32 s4, s{NB}, 7\ns_add_u32 s{SOWO}, s{SOWO}, s4\ns_mul_i32 s5, s3, 7\ns_lshr_b32 s6, s5, 1\ns_lshl_b32 s6, s6, 7",
         f"s_and_b32 s5, s3, 1\ns_lshl_b32 s7, s5, 4\ns_add_u32 s6, s6, s7\ns_mul_i32 s{SOW2}, s6, 896\ns_add_u32 s{SOW2}, s{SOW2}, s4",
         f"s_mul_i32 s{INCA}, s5, {96*896}\ns_add_u32 s{INCA}, s{INCA}, {16*896}\ns_sub_u32 s{INCB}, {128*896}, s{INCA}\ns_lshl_b32 s6, s5, 6\ns_add_u32 s{SCO}, s4, s6",
         f"s_mul_i32 s{SOW1}, s5, {7*32*3584}\ns_lshl_b32 s6, s{FBK}, 8\ns_add_u32 s{SOW1}, s{SOW1}, s6\ns_lshr_b32 s7, s3, 1\ns_lshl_b32 s6, s7, 7\ns_add_u32 s{SOW1}, s{SOW1}, s6",
         f"s_lshl_b32 s{TB}, s{TB}, 1\ns_add_u32 s6, s{TB}, s7\ns_mul_i32 s{SXO}, s6, {32*896}\ns_add_u32 s{SXO}, s{SXO}, s{SCO}",
         f"v_lshrrev_b32 v{t}, 3, v0\nv_and_b32 v29, 7, v0\nv_bfe_u32 v30, v0, 4, 1\nv_lshlrev_b32 v30, 2, v30\nv_xor_b32 v29, v29, v30\nv_lshlrev_b32 v29, 4, v29",
         f"v_mul_u32_u24 v{VQ}, 896, v{t}\nv_add_u32 v{VQ}, v{VQ}, v29\n" + "\n".join(f"v_add_u32 v{VQ+q}, {q*6144}, v{VQ}" for q in range(1, 4)),
         f"v_mul_u32_u24 v{VW1}, 3584, v{t}\nv_add_u32 v{VW1}, v{VW1}, v29\n" + "\n".join(f"v_add_u32 v{VW1+q}, {q*27648}, v{VW1}" for q in range(1, 4)),
         f"v_lshrrev_b32 v{t}, 5, v0\nv_bfe_u32 v29, v0, 2, 2\nv_lshl_add_u32 v29, v{t}, 2, v29\nv_lshlrev_b32 v29, 7, v29\nv_bfe_u32 v30, v0, 3, 1\nv_xor_b32 v30, s5, v30",
         f"v_lshl_add_u32 v29, v30, 6, v29\nv_bfe_u32 v30, v0, 4, 1\nv_lshl_add_u32 v29, v30, 5, v29\nv_and_b32 v30, 3, v0\nv_lshl_add_u32 v29, v30, 3, v29",
         f"v_add_u32 v{VA0}, s{SRED}, v29\nv_xor_b32 v{VA1}, 64, v{VA0}\nv_lshlrev_b32 v{VB2}, 3, v{t}\nv_and_b32 v29, 31, v0\nv_mul_u32_u24 v29, 896, v29\nv_add_u32 v{VXR}, v29, v{VB2}",
         f"v_add_u32 v{VRW}, s{SRED}, v{VL16}"]
    for p in range(3):
        L.append(f"s_sub_u32 s4, s3, {1+p}\ns_and_b32 s4, s4, 3\ns_mul_i32 s4, s4, 12288\ns_add_u32 s4, s4, {RED + p*4096}\nv_add_u32 v{VRR+p}, s4, v{VL16}")
    return L

def stg_dst(k):
    if k < 4: return (AWO + 16*k, AWO + 16*k + 8)
    k -= 4; pair, i = divmod(k, 7)
    return (8*(14*pair + i), 8*(14*pair + 7 + i))
def stg_pre(k):
    if k == 0 or k == 4: return []
    if k < 4: return [f"s_add_u32 s{SOWO}, s{SOWO}, {28*896}"]
    if k == 11: return [f"s_sub_u32 s{SOW2}, s{SOW2}, {320*896}"]
    i = (k - 4) % 7
    return [f"s_add_u32 s{SOW2}, s{SOW2}, s{INCA if i % 2 == 1 else INCB}"]
def stg_load(k, q):
    srd, so = (SWO, SOWO) if k < 4 else (SW2, SOW2)
    return f"buffer_load_dwordx4 v{VQ+q}, {s(srd,4)}, s{so} offen offset:{1024*q} lds"
def stg_reads(k, slot):
    d = stg_dst(k); L = []
    for kk in range(2):
        for jn in range(2):
            for t in range(2):
                L.append(f"ds_read_b64_tr_b16 {a(d[kk]+4*jn+2*t,2)}, v{VA0+jn} offset:{slot*4096 + kk*2048 + t*1024}")
    return L

def phaseB(K, poll_at=0, w1_tiles=(0, 2, 4, 6, 8, 10, 12)):
    A, vm, ds = K.A, K.vm, K.ds
    A.c("---- phase B: attention ----")
    T = VT
    FBF = 45
    A(f"s_mov_b32 s{FBF}, 0")
    ds.wait("qn")
    A(f"v_max3_u32 v{T+4}, v64, v65, v66\nv_max3_u32 v{T+5}, v67, v68, v69\nv_max3_u32 v{T+4}, v{T+4}, v70, v71\nv_max_u32 v{T+4}, v{T+4}, v{T+5}")
    A(f"v_mov_b32 v{T+3}, {fhex(4000.0)}")
    A.lab("L_attn")
    def kvload(t):
        return [("L", ("kv", t), f"buffer_load_dwordx4 {v(R+16*(t%4)+4*i,4)}, v{VKV}, {s(SWS,4)}, s{KVO} offen offset:{1024*i} sc1") for i in range(4)]
    KVA = [f"s_add_u32 s{KVO}, s{KVO}, 16384", f"s_and_b32 s{KVO}, s{KVO}, 0x3ffff"]
    def check():
        poll_check(K, 1, x2=True, t=T+5)
        A.stamp("pollA")
        for t in (1, 2, 3):
            for x in KVA: A(x)
            if t == 1:
                A(f"v_mul_f32 v{T+5}, v{T+4}, v{VPD+1}\nv_cmp_ge_f32 vcc, v{T+3}, v{T+5}")
            for _, tg, tx in kvload(t): vm.issue(tg, tx)
        A(f"s_cmp_eq_u64 vcc, -1\ns_cselect_b32 s4, 1, s{FBF}\ns_cmp_eq_u32 s4, 0\ns_cbranch_scc1 L_fallback")
    def emit(items):
        for it in items:
            if isinstance(it, str): A(it)
            elif it[0] == "L": vm.issue(it[1], it[2])
            elif it[0] == "T": ds.issue(it[1], it[2])
            elif it[0] == "W":
                p = []
                if it[1] is not None:
                    w = vm.waitstr(it[1])
                    if w: p.append(w)
                if it[2] is not None:
                    w = ds.waitstr(it[2])
                    if w: p.append(w)
                if p: A("s_waitcnt " + " ".join(p))
            elif it[0] == "F": it[1]()
    def tile_slots(t):
        sl = [[] for _ in range(16)]
        TT = [("T", ("tr", t-2), x) for x in stg_reads(t-2, (t-2) % 3)] if t >= 2 else []
        tpos = [0, 1, 2, 3, 6, 7, 10, 11] if t < 15 else [0, 1, 2, 3, 4, 5, 6, 7]
        if t >= 2: sl[0].append(("W", ("stg", t-2), ("tr", t-3) if t >= 3 else None))
        if t <= 13:
            sl[1].append(f"s_add_u32 m0, s{SRED}, {(t%3)*4096}")
            sl[2] += stg_pre(t)
            for q in range(4): sl[4 + q//2].append(("L", ("stg", t), stg_load(t, q)))
        if t == 4: sl[3] += [f"v_add_u32 v{VQ+2}, {16*896}, v{VQ+2}", f"v_add_u32 v{VQ+3}, {16*896}, v{VQ+3}"]
        if 1 <= t <= 12:
            sl[3].insert(0, KVA[0]); sl[6].append(KVA[1])
            kv = kvload(t+3)
            sl[8] += kv[0:2]; sl[9] += kv[2:4]
        if t in w1_tiles:
            i = w1_tiles.index(t)
            sl[7].append(f"s_add_u32 m0, s{SLX}, {i*4096}")
            if i: sl[10].append(f"s_add_u32 s{SOW1}, s{SOW1}, {32*3584}")
            for q in range(4): sl[12 + q//2].append(("L", ("w1", i), f"buffer_load_dwordx4 v{VW1+q}, {s(SW1,4)}, s{SOW1} offen offset:{1024*q} lds"))
        if t < 15: sl[11].append(("W", ("kv", t+1), None))
        if t == 0: sl[3].append(("W", None, ("qr", 2)))
        if t == 3: sl[15].append("s_barrier")
        if t == 13:
            for g in range(4): sl[8 + g//2].append(("L", "xr", f"buffer_load_dwordx2 {v(XR+2*g,2)}, v{VXR}, {s(SX,4)}, s{SXO} offen offset:{16*g}"))
            for g in range(4): sl[12 + g//2].append(("L", "xr", f"buffer_load_dwordx2 {v(B2R+2*g,2)}, v{VB2}, {s(SB2,4)}, s{SCO} offen offset:{16*g}"))
        if t == 14:
            sl[4] += [f"s_lshl_b32 s6, s{FBK}, 8"]; sl[5] += [f"s_lshl_b32 s7, s3, 6"]; sl[8] += [f"s_add_u32 s6, s6, s7"]
            sl[9] += [f"v_and_b32 v{VB1}, 31, v0"]; sl[12] += [f"v_lshlrev_b32 v{VB1}, 1, v{VB1}"]
            sl[13].append(("L", "xr", f"buffer_load_ushort v{VB1}, v{VB1}, {s(SB1,4)}, s6 offen"))
        for x, ps in zip(TT, tpos): sl[ps].append(x)
        if t == 15:
            def wr(p, g): return ("T", "rw", f"ds_write_b128 v{VRW}, {v(O+16*p+4*g,4)} offset:{p*4096+1024*g}")
            for g in range(4): sl[[9, 10, 11, 11][g]].append(wr(0, g))
            for g in range(4): sl[[14, 14, 15, 15][g]].append(wr(1, g))
        return sl
    if poll_at == 0: check()
    ds.wait(("qr", 0))
    A.mfma(SB, R, Q, "0"); A.mfma(SB, R+4, Q+4)
    ds.wait(("qr", 1))
    A.stamp("preloop")
    for t in range(16):
        sl = tile_slots(t)
        for j in range(4):
            u = 4*t + j
            if u and u == poll_at: check()
            if t in (4, 8, 12) and j == 0: A.stamp(f"t{t}")
            cur, nxt = SB + 16*(u % 2), SB + 16*((u+1) % 2)
            pc, pp = P + 8*(u % 2), P + 8*((u+1) % 2)
            nt, nj = (t, j+1) if j < 3 else (t+1, 0)
            pt, pj = (t, j-1) if j > 0 else (t-1, 3)
            if u < 63: A.mfma(nxt, R+16*(nt%4), Q+8*nj, "0")
            emit(sl[4*j])
            for i in range(0, 4): A(f"v_exp_f32 v{cur+i}, v{cur+i}")
            if u < 63: A.mfma(nxt, R+16*(nt%4)+4, Q+8*nj+4)
            emit(sl[4*j+1])
            for i in range(4, 8): A(f"v_exp_f32 v{cur+i}, v{cur+i}")
            for p in range(0, 2): A(f"v_cvt_pk_bf16_f32 v{pc+p}, v{cur+2*p}, v{cur+2*p+1}")
            if u > 0: A.mfma(O+16*pj, R+16*(pt%4)+8, pp, "0" if pt == 0 else None)
            emit(sl[4*j+2])
            for i in range(8, 12): A(f"v_exp_f32 v{cur+i}, v{cur+i}")
            for p in range(2, 4): A(f"v_cvt_pk_bf16_f32 v{pc+p}, v{cur+2*p}, v{cur+2*p+1}")
            if u > 0: A.mfma(O+16*pj, R+16*(pt%4)+12, pp+4)
            emit(sl[4*j+3])
            for i in range(12, 16): A(f"v_exp_f32 v{cur+i}, v{cur+i}")
            for p in range(4, 8): A(f"v_cvt_pk_bf16_f32 v{pc+p}, v{cur+2*p}, v{cur+2*p+1}")
    A.mfma(O+48, R+48+8, P+8); A.mfma(O+48, R+48+12, P+12)
    A(f"s_lshl_b32 s6, s{TG}, 4\ns_add_u32 s6, s6, s{HH}\ns_lshl_b32 s7, s6, 11\ns_add_u32 s7, s7, {OF}\ns_lshl_b32 s6, s6, 7\ns_add_u32 s{KVO}, s6, {FB}")
    for g in range(4): ds.issue("rw", f"ds_write_b128 v{VRW}, {v(O+32+4*g,4)} offset:{2*4096+1024*g}")
    vm.wait(("w1", 6))
    ds.all(); A("s_barrier")
    A.stamp("redbar")
    TR_ = SB
    OW = O + 48
    for j in range(3):
        for g in range(4): ds.issue(("rr", j), f"ds_read_b128 {v(TR_+16*j+4*g,4)}, v{VRR+j} offset:{1024*g}")
    for j in range(3):
        ds.wait(("rr", j))
        for p in range(8): A(f"v_pk_add_f32 {v(OW+2*p,2)}, {v(OW+2*p,2)}, {v(TR_+16*j+2*p,2)}")
    A(f"v_mov_b32 v{T}, v{OW+12}\nv_mov_b32 v{T+1}, v{OW+12}")
    A(f"v_permlane32_swap_b32 v{T}, v{T+1}")
    A(f"v_rcp_f32 v{T}, v{T+1}")
    for p in range(8): A(f"v_pk_mul_f32 {v(OW+2*p,2)}, {v(OW+2*p,2)}, {v(T,2)} op_sel:[0,0] op_sel_hi:[1,0]")
    for p in range(8): A(f"v_cvt_pk_bf16_f32 v{TR_+p}, v{OW+2*p}, v{OW+2*p+1}")
    A("s_mov_b32 exec_lo, 0")
    A(f"v_mov_b32 v{TR_+6}, 0\nv_mov_b32 v{TR_+7}, 0")
    A("s_mov_b32 exec_lo, -1")
    for i in range(2): vm.issue("ost", f"buffer_store_dwordx4 {v(TR_+4*i,4)}, v{VL16}, {s(SWS,4)}, s7 offen offset:{1024*i} sc1")
    A.stamp("ost")

def fallback(K):
    A = K.A
    T = VT
    A.lab("L_fallback")
    A("s_waitcnt vmcnt(0) lgkmcnt(0)")
    M = SB + 24; KT = SB + 16
    for j in range(4): A(f"v_mov_b32 v{M+j}, {fhex(float('-inf'))}")
    A(f"s_mov_b32 s7, 0")
    A.lab("L_fbloop")
    for i in range(2): A(f"buffer_load_dwordx4 {v(KT+4*i,4)}, v{VKV}, {s(SWS,4)}, s7 offen offset:{1024*i} sc1")
    A("s_waitcnt vmcnt(0)")
    for j in range(4):
        A.mfma(SB, KT, Q+8*j, "0"); A.mfma(SB, KT+4, Q+8*j+4)
        for p in range(8): A(f"v_max3_f32 v{M+j}, v{SB+2*p}, v{SB+2*p+1}, v{M+j}")
    A(f"s_add_u32 s7, s7, 16384\ns_cmp_lt_u32 s7, {16*16384}\ns_cbranch_scc1 L_fbloop")
    A(f"v_lshlrev_b32 v{T+6}, 2, v0")
    for j in range(4):
        A(f"s_add_u32 s4, s3, {j+1}\ns_and_b32 s4, s4, 3\ns_lshl_b32 s4, s4, 2\ns_add_u32 s4, s4, s3\ns_lshl_b32 s4, s4, 8\ns_add_u32 s4, s4, {LFB}")
        A(f"v_add_u32 v{T+5}, s4, v{T+6}")
        A(f"ds_write_b32 v{T+5}, v{M+j}")
    A("s_waitcnt lgkmcnt(0)\ns_barrier")
    A(f"v_and_b32 v{T+6}, 31, v0\nv_lshlrev_b32 v{T+6}, 2, v{T+6}")
    for j in range(4):
        A(f"s_add_u32 s4, s3, {j+1}\ns_and_b32 s4, s4, 3\ns_lshl_b32 s4, s4, 10\ns_add_u32 s4, s4, {LFB}")
        A(f"v_add_u32 v{T+5}, s4, v{T+6}")
        for w in range(8): A(f"ds_read_b32 v{SB+w}, v{T+5} offset:{128*w}")
        A("s_waitcnt lgkmcnt(0)")
        A(f"v_max3_f32 v{SB}, v{SB}, v{SB+1}, v{SB+2}\nv_max3_f32 v{SB+3}, v{SB+3}, v{SB+4}, v{SB+5}\nv_max3_f32 v{SB}, v{SB}, v{SB+6}, v{SB+7}")
        A(f"v_max_f32 v{SB}, v{SB}, v{SB+3}")
        A(f"v_sub_f32 v{SB}, 0, v{SB}")
        A(f"v_cvt_pk_bf16_f32 v{SB+1}, v{SB}, v{SB}\nv_and_b32 v{SB+2}, 0xffff0000, v{SB+1}\nv_sub_f32 v{SB}, v{SB}, v{SB+2}")
        A(f"v_cvt_pk_bf16_f32 v{SB+3}, v{SB}, v{SB}\nv_and_b32 v{SB+4}, 0xffff0000, v{SB+3}\nv_sub_f32 v{SB}, v{SB}, v{SB+4}")
        A(f"v_cvt_pk_bf16_f32 v{SB+5}, v{SB}, v{SB}")
        A("s_mov_b32 exec_lo, 0")
        A(f"v_and_b32 v{SB+1}, 0xffff, v{SB+1}\nv_or_b32 v{Q+8*j+6}, v{SB+1}, v{SB+4}\nv_and_b32 v{Q+8*j+7}, 0xffff, v{SB+5}")
        A("s_mov_b32 exec_lo, -1")
    A(f"s_mov_b32 s45, 1\ns_lshl_b32 s{KVO}, s{RB}, 14")
    A("s_branch L_attn")
```

```python
from mkB import *
WE = 96
ACC_C = 112; OFR = 32
VD0, VD1 = 7, 8
VCR = 29
VONE = 28
def unpack(A, dst, src, n=8):
    for p in range(n): A(f"v_lshlrev_b32 v{dst+2*p}, 16, v{src+p}\nv_and_b32 v{dst+2*p+1}, 0xffff0000, v{src+p}")

def bubbleBC(K):
    A, vm, ds = K.A, K.vm, K.ds
    T = VT
    A.c("---- B->C bubble ----")
    A(f"s_cmp_lt_u32 s2, 224\ns_cbranch_scc1 L_goC")
    A("s_waitcnt vmcnt(0)")
    A(f"s_add_u32 s5, s{TAG}, 1\nv_mov_b32 v{T}, s5\ns_mov_b64 exec, 1")
    A(f"buffer_store_dword v{T}, off, {s(SWS,4)}, s{KVO} sc1")
    A("s_mov_b64 exec, -1\ns_branch L_fin")
    A.lab("L_goC")
    A("s_barrier")
    CB = 128
    A(f"s_lshr_b32 s4, s3, 1\ns_mul_i32 s4, s4, {2*LXW}\ns_sub_u32 s4, s4, s{SRED}\nv_add_u32 v{T+1}, s4, v{VA0}")
    A(f"v_mov_b32 v{VONE}, 0x3f803f80\nv_mov_b32 v{T+3}, 0\nv_mov_b32 v{T+4}, 0")
    def rd(ks):
        for t in range(2): ds.issue(("cs", ks), f"ds_read_b64_tr_b16 {v(CB+4*ks+2*t,2)}, v{T+1} offset:{ks*2048+t*1024}")
    for ks in range(7): rd(ks)
    A(f"s_and_b32 s5, s3, 1\ns_lshl_b32 s5, s5, 6\nv_subrev_u32 v{VD0}, s{SRED}, v{VA0}\nv_xor_b32 v{VD0}, s5, v{VD0}\nv_xor_b32 v{VD1}, 64, v{VD0}")
    for j in range(1, 4):
        A(f"s_xor_b32 s4, s3, {j}\ns_mul_i32 s4, s4, 12288\ns_add_u32 s4, s4, {RED + (j-1)*4096}\nv_add_u32 v{VCR+j-1}, s4, v{VL16}")
    A(f"v_and_b32 v{T+5}, 1, v0\nv_bfe_u32 v{T+6}, v0, 1, 2\nv_lshl_add_u32 v{T+5}, v{T+5}, 4, v{T+6}\nv_lshlrev_b32 v{T+5}, 7, v{T+5}")
    A(f"s_lshl_b32 s4, s{TB}, 4\ns_lshl_b32 s5, s3, 2\ns_add_u32 s4, s4, s5\ns_lshl_b32 s4, s4, 7\ns_add_u32 s4, s4, {FB}\nv_add_u32 v{VPA}, s4, v{T+5}")
    for ks in range(28):
        if ks + 7 < 28: rd(ks + 7)
        ds.wait(("cs", ks))
        for j in range(4): A(f"v_dot2c_f32_bf16 v{T+3+(j&1)}, v{CB+4*ks+j}, v{VONE}")
    vm.wait("xr")
    A(f"v_add_f32 v{T+3}, v{T+3}, v{T+4}\nv_lshl_or_b32 v{WE+2}, v{VB1}, 16, v{VB1}\nv_mov_b32 v{WE+3}, 0")
    A(f"v_cvt_pk_bf16_f32 v{WE}, v{T+3}, v{T+3}\nv_and_b32 v{T+4}, 0xffff0000, v{WE}\nv_sub_f32 v{T+3}, v{T+3}, v{T+4}\nv_cvt_pk_bf16_f32 v{WE+1}, v{T+3}, v{T+3}")
    A(f"s_mov_b32 exec_lo, 0\nv_mov_b32 v{WE+2}, 0\ns_mov_b32 exec_lo, -1")
    ds.issue("we", f"ds_write_b128 v{VRW}, {v(WE,4)}")
    A(f"v_add_u32 v{T+1}, {RED}, v{VL16}")
    ds.all(); A("s_barrier")
    for ft in range(4): ds.issue("we", f"ds_read_b128 {v(WE+4*ft,4)}, v{T+1} offset:{ft*12288}")
    A.stamp("cs")
    vm.wait("ost")
    flag_store(K, KVO, 1)
    A.stamp("flagB")
    poll_issue(K)
    unpack(A, ACC_C, XR)
    ds.all(); A("s_barrier")

def phaseC(K):
    A, vm, ds = K.A, K.vm, K.ds
    T = VT
    A.c("---- phase C ----")
    S0, S1 = SOWO, SOW1
    A(f"s_lshr_b32 s4, s3, 1\ns_add_u32 s{TG}, s{TB}, s4\ns_xor_b32 s5, s{TG}, 1\ns_lshl_b32 s6, s3, 13\ns_add_u32 s6, s6, {OF}")
    A(f"s_lshl_b32 s5, s5, 15\ns_add_u32 s{S0}, s5, s6\ns_lshl_b32 s5, s{TG}, 15\ns_add_u32 s{S1}, s5, s6\nv_add_u32 v{T+2}, 4096, v{VL16}")
    SH, SS, SF = HH, RB, KVO
    A(f"s_lshr_b32 s4, s{SCO}, 6\ns_mul_i32 s5, s{TG}, 14\ns_add_u32 s5, s5, s4\ns_lshl_b32 s{SH}, s5, 11\ns_add_u32 s{SH}, s{SH}, {HF}")
    A(f"s_lshl_b32 s{SS}, s5, 8\ns_add_u32 s{SS}, s{SS}, {ST2}\ns_lshl_b32 s5, s{TG}, 4\ns_add_u32 s5, s5, s4\ns_lshl_b32 s5, s5, 7\ns_add_u32 s{SF}, s5, {FC}")
    poll_check(K, 1)
    A.stamp("pollB")
    for jt in (1, 0):
        for ks in range(8):
            vm.issue(("o", jt, ks), f"buffer_load_dwordx4 {v(OFR+32*jt+4*ks,4)}, v{VL16 if ks < 4 else T+2}, {s(SWS,4)}, s{S0 if jt else S1} offen offset:{1024*(ks%4)} sc1")
    def mm(j, ks, first): A.mfma(ACC_C+16*j, AWO+8*ks+4*(j&1), OFR+32*(j>>1)+4*ks, "0" if first else None, areg=a)
    def wr(j, g): ds.issue("cw", f"ds_write_b128 v{VRW}, {v(ACC_C+16*j+4*g,4)} offset:{(j-1)*4096+1024*g}")
    for ks in range(8):
        vm.wait(("o", 1, ks)); mm(2, ks, ks == 0); mm(3, ks, ks == 0)
    W = [(2, g) for g in range(4)] + [(3, g) for g in range(4)]
    for ks in range(8):
        vm.wait(("o", 0, ks)); mm(1, ks, ks == 0)
        if ks >= 2:
            wr(*W.pop(0))
            if ks >= 6: wr(*W.pop(0))
    for ks in range(8):
        mm(0, ks, False)
        if 2 <= ks < 6: wr(1, ks-2)
    A(f"v_mov_b32 v{T}, 0\nv_mov_b32 v{T+1}, 0\nv_lshlrev_b32 v{T+5}, 3, v0")
    ds.all(); A("s_barrier")
    A.stamp("Cbar")
    TR_ = 32
    for j in range(3):
        for g in range(4): ds.issue(("cr", j), f"ds_read_b128 {v(TR_+16*j+4*g,4)}, v{VCR+j} offset:{1024*g}")
    for j in range(3):
        ds.wait(("cr", j))
        for p in range(8): A(f"v_pk_add_f32 {v(ACC_C+2*p,2)}, {v(ACC_C+2*p,2)}, {v(TR_+16*j+2*p,2)}")
    PK = 80
    for p in range(8): A(f"v_cvt_pk_bf16_f32 v{PK+p}, v{ACC_C+2*p}, v{ACC_C+2*p+1}")
    for i in range(2): vm.issue("hst", f"buffer_store_dwordx4 {v(PK+4*i,4)}, v{VL16}, {s(SWS,4)}, s{SH} offen offset:{1024*i} sc1")
    for p in range(8): A(f"v_dot2c_f32_bf16 v{T}, v{PK+p}, v{VONE}\nv_dot2c_f32_bf16 v{T+1}, v{PK+p}, v{PK+p}")
    A(f"v_mov_b32 v{T+2}, v{T}\nv_mov_b32 v{T+3}, v{T+1}")
    A(f"v_permlane32_swap_b32 v{T}, v{T+2}\nv_permlane32_swap_b32 v{T+1}, v{T+3}")
    A(f"v_pk_add_f32 {v(T,2)}, {v(T,2)}, {v(T+2,2)}")
    A("s_mov_b32 exec_hi, 0")
    vm.issue("hst", f"buffer_store_dwordx2 {v(T,2)}, v{T+5}, {s(SWS,4)}, s{SS} offen sc1")
    A("s_mov_b32 exec_hi, -1")
    A.stamp("hst")
    A("s_barrier")
    for k in (14, 15, 16):
        A(f"s_add_u32 m0, s{SRED}, {(k-14)*4096}")
        for x in stg_pre(k): A(x)
        for q in range(4): vm.issue(("stg", k), stg_load(k, q))
    RES = 240
    for p in range(8):
        A(f"v_lshlrev_b32 v{T+2}, 16, v{B2R+p}\nv_and_b32 v{T+3}, 0xffff0000, v{B2R+p}")
        A(f"v_lshlrev_b32 v{RES+2*p}, 16, v{PK+p}\nv_and_b32 v{RES+2*p+1}, 0xffff0000, v{PK+p}")
        A(f"v_pk_add_f32 {v(RES+2*p,2)}, {v(RES+2*p,2)}, {v(T+2,2)}")
    A(f"v_and_b32 v{T+2}, 15, v0\nv_min_u32 v{T+2}, 13, v{T+2}\nv_lshlrev_b32 v{T+2}, 7, v{T+2}")
    A(f"s_lshl_b32 s4, s{TGD}, 11\ns_add_u32 s4, s4, {FC}\nv_add_u32 v{VPA}, s4, v{T+2}")
    vm.wait("hst")
    flag_store(K, SF, 1)
    A.stamp("flagC")
    poll_issue(K)
```

```python
from mkC import *
C0 = -2.0*math.sqrt(2.0/math.pi)*math.log2(math.e); C1 = C0*0.044715
HFR = 128; ACC_D = 32; WF = 64; ST = 80; XE = 112; GT = 116
K0, K1, SIG = 21, 22, 23
VH0, VH1 = 9, 10
SHI = [SOWO, SOW1, KVO, HH, RB, 47, 45]
ACC_E = [240, 32, 64, 96]
def gelu_list(acc, pk):
    L = []
    for half in range(2):
        e = range(8*half, 8*half+8)
        for i in e: L.append(f"v_mul_f32 v{GT+i%8}, v{acc+i}, v{acc+i}")
        for i in e: L.append(f"v_fma_f32 v{GT+i%8}, v{GT+i%8}, v{K1}, v{K0}")
        for i in e: L.append(f"v_mul_f32 v{GT+i%8}, v{GT+i%8}, v{acc+i}")
        for i in e: L.append(f"v_exp_f32 v{GT+i%8}, v{GT+i%8}")
        for i in e: L.append(f"v_fma_f32 v{GT+i%8}, v{GT+i%8}, v{SIG}, v{SIG}")
        for i in e: L.append(f"v_rcp_f32 v{GT+i%8}, v{GT+i%8}")
        for i in e: L.append(f"v_mul_f32 v{acc+i}, v{acc+i}, v{GT+i%8}")
        for p in range(4*half, 4*half+4): L.append(f"v_cvt_pk_bf16_f32 v{pk+p}, v{acc+2*p}, v{acc+2*p+1}")
    return L

def e_load(K, st, i, jt):
    K.vm.issue(("h1", st, i), f"buffer_load_dwordx4 {v(HFR+56*(st&1)+8*i+4*jt,4)}, v{VH0+jt}, {s(SWS,4)}, s{SHI[i]} offen offset:{(st&1)*2048} sc1")

def phaseD(K, gend=22):
    A, vm, ds = K.A, K.vm, K.ds
    T = VT
    A.c("---- phase D ----")
    VS = T + 2
    SD0, SD1, SFD = 6, 7, SCO
    SHL = 47
    A(f"s_mul_i32 s{SHL}, s{TGD}, {28*1024}\ns_add_u32 s{SHL}, s{SHL}, {HF}\ns_mul_i32 s45, s{TGD}, {14*256}\ns_add_u32 s45, s45, {ST2}")
    A(f"v_and_b32 v{T+3}, 31, v0\nv_lshrrev_b32 v{T+4}, 5, v0\nv_lshlrev_b32 v{T+4}, 8, v{T+4}\nv_lshl_add_u32 v{VS}, v{T+3}, 3, v{T+4}")
    A(f"s_mul_i32 s6, s{TGD}, 112\ns_lshl_b32 s7, s{FBK}, 3\ns_add_u32 s6, s6, s7\ns_lshl_b32 s6, s6, 10\ns_add_u32 s{SD0}, s6, {H1}\ns_add_u32 s{SD1}, s{SD0}, 4096")
    A(f"s_lshl_b32 s4, s{TGD}, 4\ns_add_u32 s4, s4, s{FBK}\ns_lshl_b32 s4, s4, 7\ns_add_u32 s{SFD}, s4, {FD}")
    A(f"v_mov_b32 v{XE+3}, 0")
    def rd(st):
        ft, ks = divmod(st, 28)
        for t in range(2):
            ds.issue(("w", st), f"ds_read_b64_tr_b16 {v(WF+4*(st%4)+2*t,2)}, v{VD0+(ft&1)} offset:{ks*2048+t*1024}")
    rd(0); rd(1); rd(2)
    poll_check(K, 1)
    A.stamp("pollC")
    for ks in range(28):
        if ks and ks % 4 == 0: A(f"s_add_u32 s{SHL}, s{SHL}, 4096")
        vm.issue(("h", ks), f"buffer_load_dwordx4 {v(HFR+4*ks,4)}, v{VL16}, {s(SWS,4)}, s{SHL} offen offset:{1024*(ks%4)} sc1")
        if ks == 13:
            for i in range(7): vm.issue("st", f"buffer_load_dwordx2 {v(ST+2*i,2)}, v{VS}, {s(SWS,4)}, s45 offen offset:{512*i} sc1")
    A(f"v_and_b32 v{T+3}, 1, v0\nv_bfe_u32 v{T+4}, v0, 1, 2\nv_lshl_add_u32 v{T+3}, v{T+3}, 4, v{T+4}\nv_lshlrev_b32 v{T+3}, 7, v{T+3}")
    A(f"s_mul_i32 s5, s3, 7\ns_lshr_b32 s5, s5, 1\ns_lshl_b32 s4, s{TB}, 4\ns_add_u32 s4, s4, s5\ns_lshl_b32 s4, s4, 7\ns_add_u32 s4, s4, {FD}\nv_add_u32 v{VPA}, s4, v{T+3}")
    A(f"s_lshl_b32 s5, s5, 13\ns_and_b32 s4, s3, 1\ns_lshl_b32 s4, s4, 10\ns_add_u32 s5, s5, s4\ns_add_u32 s{SHI[0]}, s5, {H1}")
    A(f"s_mul_i32 s4, s4, 6\ns_add_u32 s4, s4, 1024\ns_sub_u32 s5, 8192, s4")
    for i in range(1, 7): A(f"s_add_u32 s{SHI[i]}, s{SHI[i-1]}, s{4 if i % 2 else 5}")
    A(f"s_mul_i32 s4, s{TG}, {112*1024}\nv_add_u32 v{VH0}, s4, v{VL16}\ns_xor_b32 s4, s{TG}, 1\ns_mul_i32 s4, s4, {112*1024}\nv_add_u32 v{VH1}, s4, v{VL16}")
    def stats():
        L = []
        for i in range(1, 7): L += [f"v_add_f32 v{ST}, v{ST}, v{ST+2*i}", f"v_add_f32 v{ST+1}, v{ST+1}, v{ST+2*i+1}"]
        L += [f"v_mov_b32 v{ST+2}, v{ST}", f"v_mov_b32 v{ST+3}, v{ST+1}",
              f"v_permlane32_swap_b32 v{ST}, v{ST+2}", f"v_permlane32_swap_b32 v{ST+1}, v{ST+3}",
              f"v_add_f32 v{ST}, v{ST}, v{ST+2}", f"v_add_f32 v{ST+1}, v{ST+1}, v{ST+3}",
              f"v_mul_f32 v{ST}, {fhex(-1.0/D)}, v{ST}", f"v_mul_f32 v{ST+1}, {fhex(1.0/D)}, v{ST+1}",
              f"v_fma_f32 v{ST+1}, -v{ST}, v{ST}, v{ST+1}", f"v_max_f32 v{ST+1}, 0, v{ST+1}", f"v_add_f32 v{ST+1}, {fhex(1e-5)}, v{ST+1}",
              f"v_rsq_f32 v{ST+2}, v{ST+1}", f"v_sqrt_f32 v{SIG}, v{ST+1}",
              f"v_cvt_pk_bf16_f32 v{XE}, v{ST}, v{ST}", f"v_and_b32 v{ST+3}, 0xffff0000, v{XE}", f"v_sub_f32 v{ST+3}, v{ST}, v{ST+3}",
              f"v_cvt_pk_bf16_f32 v{XE}, v{ST}, v{ST+3}", f"v_mov_b32 v{XE+1}, v{XE}",
              f"v_cvt_pk_bf16_f32 v{XE+2}, v{SIG}, v{SIG}", f"v_and_b32 v{ST+3}, 0xffff0000, v{XE+2}", f"v_sub_f32 v{ST+3}, v{SIG}, v{ST+3}",
              f"v_cvt_pk_bf16_f32 v{XE+2}, v{SIG}, v{ST+3}",
              f"v_mul_f32 v{K0}, {fhex(C0)}, v{ST+2}", f"v_mul_f32 v{ST+3}, v{ST+2}, v{ST+2}", f"v_mul_f32 v{K1}, {fhex(C1/C0)}, v{K0}", f"v_mul_f32 v{K1}, v{K1}, v{ST+3}"]
        return L
    def store(ft):
        pk = ST + 8*(ft & 1)
        for i in range(2): vm.issue(("sto", ft), f"buffer_store_dwordx4 {v(pk+4*i,4)}, v{VL16}, {s(SWS,4)}, s{SD0 + (ft>>1)} offen offset:{(ft&1)*2048+1024*i} sc1")
    def flag(ft):
        vm.wait(("sto", ft)); flag_store(K, SFD, ft + 1)
    for ft in range(4):
        if ft: A.stamp(f"ft{ft}")
        fill = [[] for _ in range(29)]
        if ft == 0:
            sp = spread(stats(), 8)
            fill[18].append(lambda: vm.wait("st"))
            for i in range(8): fill[18+i] += sp[i]
        else:
            G = gelu_list(ACC_D+16*((ft-1)&1), ST + 8*((ft-1)&1))
            sp = spread(G, gend - 2)
            for i in range(gend - 2): fill[2+i] += sp[i]
            if ft >= 2: fill[gend].append(lambda ft=ft: flag(ft-2))
            fill[gend].append(lambda ft=ft: store(ft-1))
        def tr(k):
            L = [lambda: vm.wait(("stg", k))]
            for x in stg_reads(k, (k-14) % 3): L.append(lambda x=x: ds.issue(("tr", k), x))
            return L
        if ft == 1:
            for k in (14, 15, 16):
                L = tr(k)
                fill[8*(k-14)].append(L[0])
                for i in range(8): fill[8*(k-14)+i].append(L[1+i])
            def q17():
                ds.wait(("tr", 14))
                A(f"s_mov_b32 m0, s{SRED}")
                for x in stg_pre(17): A(x)
                for q in range(4): vm.issue(("stg", 17), stg_load(17, q))
            fill[12].append(q17)
        if ft == 2:
            L = tr(17)
            fill[16].append(L[0])
            for i in range(8): fill[16+i].append(L[1+i])
        if ft == 3:
            fill[gend].insert(0, lambda: poll_issue(K))
            def st0():
                poll_check(K, 1, top=4)
                for i in range(7):
                    for jt in (1, 0): e_load(K, 0, i, jt)
            fill[27].append(st0)
        for ks in range(29):
            st = 28*ft + ks
            acc = ACC_D + 16*(ft & 1)
            if ks < 28:
                if st + 3 < 112:
                    if st + 3 == 56: A(f"v_add_u32 v{VD0}, {2*LXW}, v{VD0}")
                    if st + 3 == 84: A(f"v_add_u32 v{VD1}, {2*LXW}, v{VD1}")
                wait2(A, vm, ("h", ks) if ft == 0 else None, ds, ("w", st))
                A.mfma(acc, WF+4*(st%4), HFR+4*ks, "0" if ks == 0 else None)
                if st + 3 < 112: rd(st + 3)
            else:
                A.mfma(acc, WE+4*ft, XE)
            for x in fill[ks]:
                if isinstance(x, str): A(x)
                else: x()
    A.stamp("Dloop")
    poll_issue(K)
    for x in gelu_list(ACC_D+16, ST+8): A(x)
    flag(2)
    store(3)
    K.d_flag = flag

def phaseE(K):
    A, vm, ds = K.A, K.vm, K.ds
    T = VT
    A.c("---- phase E ----")
    def mm(st, i, j):
        A.mfma(ACC_E[j], 8*(7*st+i)+4*(j&1), HFR+56*(st&1)+8*i+4*(j>>1), "0" if (st == 0 and i == 0 and j) else None, areg=a)
    def loads(st):
        poll_check(K, st+1, top=4)
        if st == 2: A(f"v_add_u32 v{VH0}, 4096, v{VH0}\nv_add_u32 v{VH1}, 4096, v{VH1}")
        if st < 3:
            for i in range(7):
                for jt in (1, 0): e_load(K, st, i, jt)
        else:
            for jt in (1, 0):
                for i in range(7):
                    vm.issue(("h1", st, i, jt), f"buffer_load_dwordx4 {v(HFR+56+8*i+4*jt,4)}, v{VH0+jt}, {s(SWS,4)}, s{SHI[i]} offen offset:2048 sc1")
    A.stamp("gelu3")
    loads(1)
    VO = T + 2
    A(f"v_and_b32 v{T+3}, 31, v0\nv_mul_u32_u24 v{T+3}, 896, v{T+3}\nv_lshl_add_u32 v{VO}, v{VB2}, 1, v{T+3}")
    for st in range(3):
        for i in range(7):
            vm.wait(("h1", st, i))
            for j in range(4): mm(st, i, j)
            if st == 0 and i == 3:
                K.d_flag(3)
                A.stamp("flagD")
            if i == 4: poll_issue(K)
        loads(st + 2) if st < 2 else None
    A.stamp("E2")
    def wr(j, g): ds.issue("ew", f"ds_write_b128 v{VRW}, {v(ACC_E[j]+4*g,4)} offset:{(j-1)*4096+1024*g}")
    for i in range(7):
        vm.wait(("h1", 3, i, 1)); mm(3, i, 2); mm(3, i, 3)
    W = [(2, g) for g in range(4)] + [(3, g) for g in range(4)]
    for i in range(7):
        vm.wait(("h1", 3, i, 0)); mm(3, i, 1)
        if i >= 2:
            wr(*W.pop(0))
            if i >= 4: wr(*W.pop(0))
    for i in range(7):
        mm(3, i, 0)
        if 2 <= i < 6: wr(1, i-2)
    ds.all(); A("s_barrier")
    A.stamp("Ebar")
    TR_ = 128; AC = ACC_E[0]
    for j in range(3):
        for g in range(4): ds.issue(("er", j), f"ds_read_b128 {v(TR_+16*j+4*g,4)}, v{VCR+j} offset:{1024*g}")
    for j in range(3):
        ds.wait(("er", j))
        for p in range(8): A(f"v_pk_add_f32 {v(AC+2*p,2)}, {v(AC+2*p,2)}, {v(TR_+16*j+2*p,2)}")
    PK = 80
    for p in range(8): A(f"v_cvt_pk_bf16_f32 v{PK+p}, v{AC+2*p}, v{AC+2*p+1}")
    for gp in range(2):
        A(f"v_permlane32_swap_b32 v{PK+4*gp}, v{PK+4*gp+2}\nv_permlane32_swap_b32 v{PK+4*gp+1}, v{PK+4*gp+3}")
    for gp in range(2):
        A(f"buffer_store_dwordx4 {v(PK+4*gp,4)}, v{VO}, {s(SOUT,4)}, s{SXO} offen offset:{32*gp}")
    A("s_or_b32 s4, s2, s3\ns_cmp_lg_u32 s4, 0\ns_cbranch_scc1 L_fin")
    A(f"v_mov_b32 v{T}, s{TAG}\ns_mov_b64 exec, 1")
    A(f"buffer_store_dword v{T}, off, {s(SWS,4)}, 0 offset:{EP}")
    A("s_mov_b64 exec, -1")
```

```python
import sys, json
from base import *
import base, hazard
from mkD import *
def build(out, trace=False, dbgq=False, multi=True, **kw):
    TRACE[0] = trace
    K = Ctx(); A = K.A = Asm()
    K.vm = Trk(A, "vmcnt", 63); K.ds = Trk(A, "lgkmcnt", 15)
    K.attn_setup = attn_setup
    prologue(K)
    phaseA(K, dbgq)
    phaseB(K, poll_at=kw.get("poll_at", 0))
    bubbleBC(K); phaseC(K); phaseD(K); phaseE(K)
    A.lab("L_fin")
    A.stamp_end()
    A.lab("L_exit")
    A("s_endpgm")
    fallback(K)
    A.lab("L_end")
    A("s_endpgm")
    name = NAME + "_kernel"
    body = hazard.fix(A.text())
    hdr = (f"; @launch kernel={name} grid=(256,1,1) block=(256,1,1) lds={LDS_TOTAL}" if multi else f"; @launch grid=(256,1,1) block=(256,1,1) lds={LDS_TOTAL}")
    open(out, "w").write(hdr + '\n.amdgcn_target "amdgcn-amd-amdhsa--gfx950"\n' + kernel_wrap(name, body, 256, 256))
    json.dump(STAMPS if trace else {}, open(out + ".stamps", "w"))
    print(out, "lines", body.count("\n"), "nops", body.count("s_nop"))
if __name__ == "__main__":
    kw = {}
    for x in sys.argv[2:]:
        if "=" in x:
            k, val = x.split("="); kw[k] = int(val)
    build(sys.argv[1], trace="trace" in sys.argv, dbgq="dbgq" in sys.argv, multi="single" not in sys.argv, **kw)
```
